```python
import torch

def _softmax(x, axis=-1):
    return torch.softmax(x, dim=axis)
def _gelu(x):
    return torch.nn.functional.gelu(x, approximate="tanh")
def _silu(x):
    return torch.nn.functional.silu(x)
def _sigmoid(x):
    return torch.sigmoid(x)
def _layernorm(x, axis=-1, eps=1e-5):
    m = x.mean(dim=axis, keepdim=True)
    v = x.var(dim=axis, keepdim=True, unbiased=False)
    return (x - m) / torch.sqrt(v + eps)
def _scatter_add(tgt, idx, src, axis=0):
    return tgt.clone().index_add_(axis, idx, src)
def _segment_sum(src, seg, n):
    out = torch.zeros((n,) + src.shape[1:], dtype=src.dtype)
    return out.index_add_(0, seg, src)
def _pad(x, pw):
    flat = tuple(v for pair in reversed(pw) for v in pair)
    return torch.nn.functional.pad(x, flat)

kernel_name = 'parallel_sum__softmax_full_mha__dense_activation_squared_relu__prompt'

def setup_inputs():

    _w = (lambda a: (lambda t: t.to(torch.bfloat16) if t.is_floating_point() else t)(torch.as_tensor(a)))
    def _A_setup():
        B, S, D = 1, 2048, 448
        return {
            "x": _w((lambda *s: torch.randn(*s, dtype=torch.bfloat16) * 0.05)(B, S, D)),
            "wqkv": _w((lambda *s: torch.randn(*s, dtype=torch.bfloat16) * 0.2)(D, 3 * D)),
            "wo": _w((lambda *s: torch.randn(*s, dtype=torch.bfloat16) * 0.1)(D, D)),
        }
    _A_in = _A_setup()

    def _B_setup():
        B, S, D, F = 1, 2048, 448, 1792
        return {
            "x": _w((lambda *s: torch.randn(*s, dtype=torch.bfloat16) * 0.05)(B, S, D)),
            "w1": _w((lambda *s: torch.randn(*s, dtype=torch.bfloat16) * 0.1)(D, F)),
            "b1": _w((lambda *s: torch.randn(*s, dtype=torch.bfloat16) * 0.8)(F)),
            "w2": _w((lambda *s: torch.randn(*s, dtype=torch.bfloat16) * 0.1)(F, D)),
            "b2": _w((lambda *s: torch.randn(*s, dtype=torch.bfloat16) * 12.8)(D)),
        }
    _B_in = _B_setup()

    return {
        "A_x": _A_in["x"],
        "A_wqkv": _A_in["wqkv"],
        "A_wo": _A_in["wo"],
        "B_x": _B_in["x"],
        "B_w1": _B_in["w1"],
        "B_b1": _B_in["b1"],
        "B_w2": _B_in["w2"],
        "B_b2": _B_in["b2"],
    }

def reference(A_x, A_wqkv, A_wo, B_x, B_w1, B_b1, B_w2, B_b2):
    def _A_ref(x, wqkv, wo):
        B, S, D = x.shape
        H = 16; Dh = D // H
        qkv = (lambda x, *d: x.permute(*d))((x @ wqkv).reshape(B, S, 3, H, Dh), 2, 0, 3, 1, 4)
        q, k, v = qkv[0], qkv[1], qkv[2]
        scale = Dh ** -0.5
        scores = torch.einsum("bhqd,bhkd->bhqk", q, k) * scale
        p = _softmax(scores, axis=-1)
        o = torch.einsum("bhqk,bhkd->bhqd", p, v)
        return (lambda x, *d: x.permute(*d))(o, 0, 2, 1, 3).reshape(B, S, D) @ wo

    def _B_ref(x, w1, b1, w2, b2):
        h = torch.einsum("bsd,df->bsf", x, w1) + b1
        zero = torch.zeros_like(h)
        r = torch.where(h > zero, h, zero)
        h = r * r
        out = torch.einsum("bsf,fd->bsd", h, w2) + b2
        return out

    x = A_x
    xn = _layernorm(x, axis=-1)
    return x + _A_ref(xn, A_wqkv, A_wo) + _B_ref(xn, B_w1, B_b1, B_w2, B_b2)
```

```python
import re

TRANS = ("v_exp_f32", "v_log_f32", "v_rcp_f32", "v_rsq_f32", "v_sqrt_f32", "v_sin_f32", "v_cos_f32",
         "v_exp_f16", "v_log_f16", "v_rcp_f16", "v_rsq_f16", "v_sqrt_f16", "v_rcp_iflag_f32")

def split_ops(s):
    out, depth, cur = [], 0, ""
    for ch in s:
        if ch == "[": depth += 1
        if ch == "]": depth -= 1
        if ch == "," and depth == 0:
            out.append(cur.strip()); cur = ""
        else:
            cur += ch
    if cur.strip(): out.append(cur.strip())
    return out

def regs_of(tok):
    tok = tok.strip()
    tok = tok.lstrip("-")
    if tok.startswith("abs(") and tok.endswith(")"): tok = tok[4:-1]
    if tok.startswith("|") and tok.endswith("|"): tok = tok[1:-1]
    m = re.fullmatch(r"([vsa])(\d+)", tok)
    if m: return {(m.group(1), int(m.group(2)))}
    m = re.fullmatch(r"([vsa])\[(\d+):(\d+)\]", tok)
    if m: return {(m.group(1), i) for i in range(int(m.group(2)), int(m.group(3)) + 1)}
    if tok == "vcc": return {("s", "vcc_lo"), ("s", "vcc_hi")}
    if tok in ("vcc_lo", "vcc_hi"): return {("s", tok)}
    if tok == "exec": return {("s", "exec_lo"), ("s", "exec_hi")}
    if tok in ("exec_lo", "exec_hi"): return {("s", tok)}
    if tok == "m0": return {("s", "m0")}
    return set()

class Ins:
    __slots__ = ("text", "mn", "ops", "mods", "kind", "wr", "rd", "rdA", "rdB", "rdC", "passes", "ws", "data", "target")
    def __init__(self, text):
        self.text = text
        t = text.split(";")[0].strip()
        parts = t.split(None, 1)
        self.mn = parts[0]
        rest = parts[1] if len(parts) > 1 else ""
        ops = split_ops(rest)
        self.mods = ""
        if ops:
            last = ops[-1].split(None, 1)
            if len(last) > 1 and not last[0].endswith(","):
                ops[-1] = last[0]; self.mods = last[1]
        self.ops = ops
        self.wr, self.rd = set(), set()
        self.rdA = self.rdB = self.rdC = set()
        self.passes = 0; self.ws = 1; self.data = set(); self.target = None
        mn = self.mn.replace("_e32", "").replace("_e64", "").replace("_sdwa", "").replace("_dpp", "")
        R = lambda i: regs_of(ops[i]) if i < len(ops) else set()
        allmods = self.mods
        if mn == "s_nop":
            self.kind = "nop"; self.ws = int(ops[0], 0) + 1
        elif mn.startswith("v_mfma") or mn.startswith("v_smfmac"):
            self.kind = "mfma"
            self.wr = R(0); self.rdA = R(1); self.rdB = R(2); self.rdC = R(3)
            self.rd = self.rdA | self.rdB | self.rdC
            self.passes = 8 if "32x32" in mn else 4
        elif mn.startswith("v_cmp"):
            self.kind = "valu"; self.wr = R(0)
            for i in range(1, len(ops)): self.rd |= R(i)
            if mn.startswith("v_cmpx"): self.wr |= regs_of("exec")
        elif mn in ("v_readfirstlane_b32", "v_readlane_b32"):
            self.kind = "valu"; self.wr = R(0)
            for i in range(1, len(ops)): self.rd |= R(i)
        elif mn.startswith("v_permlane") and "swap" in mn:
            self.kind = "valu"; self.wr = R(0) | R(1); self.rd = R(0) | R(1)
        elif mn.startswith("v_"):
            self.kind = "valu"; self.wr = R(0)
            st = 1
            if "_co_" in mn or mn in ("v_div_scale_f32", "v_mad_u64_u32"):
                self.wr |= R(1); st = 2
            for i in range(st, len(ops)): self.rd |= R(i)
            if mn in ("v_fmac_f32", "v_dot2c_f32_bf16", "v_pk_fmac_f16", "v_writelane_b32", "v_fmac_f16"): self.rd |= R(0)
            if mn == "v_cndmask_b32" and len(ops) == 3: self.rd |= regs_of("vcc")
            if mn.startswith("v_addc") or mn.startswith("v_subb"): pass
            if "sdwa" in self.mn or "dpp" in self.mn or "UNUSED_PRESERVE" in allmods or "row_" in allmods or "quad_perm" in allmods:
                self.rd |= R(0)
        elif mn.startswith("ds_"):
            self.kind = "ds"
            if mn.startswith("ds_read") or mn.startswith("ds_bpermute") or mn.startswith("ds_permute") or mn.startswith("ds_swizzle") or "_rtn" in mn:
                self.wr = R(0)
                for i in range(1, len(ops)): self.rd |= R(i)
            else:
                for i in range(len(ops)): self.rd |= R(i)
        elif mn.startswith("buffer_"):
            self.kind = "vmem"
            islds = re.search(r"\blds\b", allmods) is not None
            if mn.startswith("buffer_load"):
                if islds:
                    for i in range(len(ops)): self.rd |= R(i)
                    self.rd |= regs_of("m0"); self.kind = "vmem_lds"
                else:
                    self.wr = R(0)
                    for i in range(1, len(ops)): self.rd |= R(i)
            elif mn.startswith("buffer_store") or mn.startswith("buffer_atomic"):
                for i in range(len(ops)): self.rd |= R(i)
                if "x4" in mn or "x3" in mn: self.data = R(0)
                if mn.startswith("buffer_atomic") and "sc0" in allmods: self.wr = R(0)
            else:
                pass
        elif mn.startswith("global_"):
            self.kind = "vmem"
            if mn.startswith("global_load_lds"):
                for i in range(len(ops)): self.rd |= R(i)
                self.rd |= regs_of("m0"); self.kind = "vmem_lds"
            elif mn.startswith("global_load"):
                self.wr = R(0)
                for i in range(1, len(ops)): self.rd |= R(i)
            elif mn.startswith("global_store"):
                for i in range(len(ops)): self.rd |= R(i)
                if "x4" in mn or "x3" in mn: self.data = R(1)
            elif mn.startswith("global_atomic"):
                if "sc0" in allmods:
                    self.wr = R(0)
                    for i in range(1, len(ops)): self.rd |= R(i)
                else:
                    for i in range(len(ops)): self.rd |= R(i)
        elif mn.startswith("s_cbranch") or mn == "s_branch":
            self.kind = "branch"; self.target = ops[0]
            if "vcc" in mn: self.rd = regs_of("vcc")
            if "exec" in mn: self.rd = regs_of("exec")
        elif mn in ("s_waitcnt", "s_barrier", "s_endpgm", "s_setprio", "s_sleep", "s_sethalt"):
            self.kind = "misc"
        elif mn.startswith("s_cmp") or mn.startswith("s_bitcmp"):
            self.kind = "salu"
            for i in range(len(ops)): self.rd |= R(i)
        elif mn.startswith("s_load") or mn.startswith("s_buffer_load") or mn.startswith("s_memtime") or mn.startswith("s_memrealtime"):
            self.kind = "smem"; self.wr = R(0)
            for i in range(1, len(ops)): self.rd |= R(i)
        elif mn.startswith("s_"):
            self.kind = "salu"; self.wr = R(0)
            for i in range(1, len(ops)): self.rd |= R(i)
            if "saveexec" in mn: self.wr |= regs_of("exec"); self.rd |= regs_of("exec")
            if mn in ("s_addk_i32", "s_mulk_i32"): self.rd |= R(0)
        else:
            raise ValueError("unknown instruction: " + text)

def is_v(r): return r[0] in ("v", "a")
def is_s(r): return r[0] == "s"

class State:
    def __init__(self):
        self.t = 0
        self.valu_w = {}
        self.trans_w = {}
        self.mfma_w = {}
        self.mfma_c = {}
        self.store_d = {}
        self.m0_w = -100
        self.dot_w = {}
    def copy(self):
        s = State(); s.t = self.t
        s.valu_w = dict(self.valu_w); s.trans_w = dict(self.trans_w); s.mfma_w = dict(self.mfma_w)
        s.mfma_c = dict(self.mfma_c); s.store_d = dict(self.store_d); s.m0_w = self.m0_w; s.dot_w = dict(self.dot_w)
        return s

MF_AB = {4: 8, 8: 12}; MF_VALU = {4: 8, 8: 12}; MF_COVER = {4: 6, 8: 10}; MF_WARC = {4: 3, 8: 7}

def need(st, ins):
    req = 0; why = ""
    def chk(t0, n, w):
        nonlocal req, why
        gap = st.t - t0 - 1
        if gap < n and n - gap > req:
            req = n - gap; why = w
    mn = ins.mn
    if ins.kind == "mfma":
        for r in ins.rd:
            if r in st.valu_w and is_v(r): chk(st.valu_w[r], 2, f"valu->mfma {r}")
        for r in ins.rdA | ins.rdB:
            if r in st.mfma_w: chk(st.mfma_w[r][0], MF_AB[st.mfma_w[r][1]], f"mfmaD->AB {r}")
        for r in ins.rdC:
            if r in st.mfma_w:
                t0, p, D = st.mfma_w[r]
                if D == frozenset(ins.rdC) and p == ins.passes: continue
                chk(t0, MF_COVER[p], f"mfmaD->C overlap {r}")
        for r in ins.wr:
            if r in st.mfma_w and r not in ins.rdC:
                t0, p, D = st.mfma_w[r]
                chk(t0, MF_COVER[p], f"mfmaD WAW {r}")
    if ins.kind == "valu":
        for r in ins.rd | ins.wr:
            if r in st.mfma_w: chk(st.mfma_w[r][0], MF_VALU[st.mfma_w[r][1]], f"mfmaD->valu {r}")
        for r in ins.wr:
            if r in st.mfma_c: chk(st.mfma_c[r][0], MF_WARC[st.mfma_c[r][1]], f"mfmaC WAR {r}")
            if r in st.store_d: chk(st.store_d[r], 2, f"store data WAR {r}")
        base = mn.replace("_e32", "").replace("_e64", "")
        for r in ins.rd | ins.wr:
            if r in st.dot_w:
                t0, op = st.dot_w[r]
                if op == base and r in ins.wr and base.startswith("v_dot2c"): continue
                chk(t0, 3, f"dot->valu {r}")
        if base not in TRANS:
            for r in ins.rd:
                if r in st.trans_w: chk(st.trans_w[r], 1, f"trans->valu {r}")
        for r in ins.rd:
            if is_s(r) and r in st.valu_w and r[1] not in ("exec_lo", "exec_hi"):
                n = 4 if base in ("v_readlane_b32", "v_writelane_b32") else 2
                chk(st.valu_w[r], n, f"valu sgpr->valu {r}")
        if base in ("v_readfirstlane_b32", "v_readlane_b32"):
            for r in ins.rd:
                if is_v(r) and r in st.valu_w: chk(st.valu_w[r], 1, f"valu->readlane {r}")
        if base.startswith("v_permlane"):
            for r in ins.rd:
                if is_v(r) and r in st.valu_w: chk(st.valu_w[r], 2, f"valu->permlane {r}")
        if "dpp" in mn or "row_" in ins.mods or "quad_perm" in ins.mods:
            for r in ins.rd:
                if is_v(r) and r in st.valu_w: chk(st.valu_w[r], 2, f"valu->dpp {r}")
    if ins.kind in ("vmem", "vmem_lds", "ds", "mfma"):
        for r in ins.rd:
            if r in st.dot_w: chk(st.dot_w[r][0], 3, f"dot->other {r}")
    if ins.kind in ("vmem", "vmem_lds", "ds"):
        for r in ins.rd | ins.wr:
            if r in st.mfma_w: chk(st.mfma_w[r][0], MF_VALU[st.mfma_w[r][1]], f"mfmaD->mem {r}")
        if ins.kind != "ds":
            for r in ins.rd:
                if is_s(r) and r in st.valu_w: chk(st.valu_w[r], 5, f"valu sgpr->vmem {r}")
        for r in ins.wr:
            if r in st.store_d: chk(st.store_d[r], 1, f"store data WAR(load) {r}")
        if ins.kind == "vmem_lds": chk(st.m0_w, 1, "m0->lds dma")
    if ins.kind in ("salu", "smem", "branch"):
        for r in ins.rd:
            if is_s(r) and r in st.valu_w: chk(st.valu_w[r], 1 if ins.kind != "branch" else 1, f"valu sgpr->salu {r}")
    return req, why

def apply(st, ins):
    t = st.t
    if ins.kind == "valu":
        base = ins.mn.replace("_e32", "").replace("_e64", "")
        for r in ins.wr:
            st.valu_w[r] = t
            st.mfma_w.pop(r, None)
            if base in TRANS: st.trans_w[r] = t
            else: st.trans_w.pop(r, None)
            if base.startswith("v_dot"): st.dot_w[r] = (t, base)
            else: st.dot_w.pop(r, None)
    elif ins.kind == "mfma":
        D = frozenset(ins.wr)
        for r in ins.rdC: st.mfma_c[r] = (t, ins.passes)
        for r in ins.wr:
            st.mfma_w[r] = (t, ins.passes, D); st.valu_w.pop(r, None); st.trans_w.pop(r, None)
    elif ins.kind in ("vmem", "ds", "smem", "salu"):
        for r in ins.wr:
            st.valu_w.pop(r, None); st.trans_w.pop(r, None); st.mfma_w.pop(r, None)
        for r in ins.data: st.store_d[r] = t
        if ("s", "m0") in ins.wr: st.m0_w = t
    st.t += ins.ws

class Prog:
    def __init__(self):
        self.items = []
        self.nlab = 0
    def i(self, text):
        for line in text.split("\n"):
            line = line.strip()
            if not line: continue
            if line.startswith(";"): self.items.append(("r", "  " + line))
            elif line.endswith(":"): self.items.append(("l", line[:-1]))
            elif line.startswith("."): self.items.append(("r", line))
            else: self.items.append(("i", line))
    def __call__(self, text): self.i(text)
    def label(self, name): self.items.append(("l", name))
    def newlabel(self, base="L"):
        self.nlab += 1; return f"{base}_{self.nlab}"
    def raw(self, text): self.items.append(("r", text))
    def finalize(self, verbose=False):
        out = []; st = State(); nn = 0
        parsed = []
        for kind, text in self.items:
            if kind == "i": parsed.append((kind, text, Ins(text)))
            else: parsed.append((kind, text, None))
        states_at_branch = []
        for kind, text, ins in parsed:
            if kind == "i":
                req, why = need(st, ins)
                if req > 0:
                    n = req
                    while n > 0:
                        k = min(n, 16)
                        nop = Ins(f"s_nop {k-1}"); out.append(("i", f"s_nop {k-1}", nop)); apply(st, nop); n -= k
                    nn += req
                    if verbose: print(f"  nop {req} before [{text}] : {why}")
                out.append((kind, text, ins))
                if ins.kind == "branch": states_at_branch.append((len(out) - 1, st.copy()))
                apply(st, ins)
                if ins.mn in ("s_branch", "s_endpgm"):
                    st = State(); st.t = 0
            else:
                out.append((kind, text, ins))
        labels = {text: idx for idx, (kind, text, ins) in enumerate(out) if kind == "l"}
        errs = []
        def walk(idx, s, budget, depth, origin):
            while idx < len(out) and budget > 0:
                kind, text, ins = out[idx]
                if kind == "i":
                    req, why = need(s, ins)
                    if req > 0: errs.append(f"cross-branch hazard from [{origin}] at [{text}]: need {req} more ({why})")
                    apply(s, ins); budget -= ins.ws
                    if ins.kind == "branch" and depth < 3 and ins.target in labels:
                        walk(labels[ins.target], s.copy(), budget, depth + 1, origin)
                        if ins.mn == "s_branch": return
                    if ins.mn == "s_endpgm": return
                idx += 1
        for idx, s in states_at_branch:
            ins = out[idx][2]
            if ins.target in labels:
                s2 = s.copy(); apply(s2, ins)
                walk(labels[ins.target], s2, 24, 0, ins.text + f" @{idx}")
        if errs:
            for e in sorted(set(errs)): print("HAZARD:", e)
            raise RuntimeError("cross-branch hazards")
        txt = []
        for kind, text, ins in out:
            if kind == "i": txt.append("  " + text)
            elif kind == "l": txt.append(text + ":")
            else: txt.append(text)
        self.nops_inserted = nn
        return "\n".join(txt) + "\n"

def v(a, n=1): return f"v{a}" if n == 1 else f"v[{a}:{a+n-1}]"
def s(a, n=1): return f"s{a}" if n == 1 else f"s[{a}:{a+n-1}]"
def a_(a, n=1): return f"a{a}" if n == 1 else f"a[{a}:{a+n-1}]"


class Cnt:
    def __init__(self, p, name, maxn):
        self.p, self.name, self.maxn = p, name, maxn
        self.n = 0; self.done = 0; self.tags = {}
    def issue(self, text, tag=None):
        self.p(text); self.n += 1
        if tag is not None: self.tags[tag] = self.n
        return self.n
    def wait(self, tag_or_n, force=False):
        k = self.tags[tag_or_n] if not isinstance(tag_or_n, int) else tag_or_n
        if k <= self.done and not force: return
        out = self.n - k
        out = min(out, self.maxn)
        self.p(f"s_waitcnt {self.name}({out})")
        self.done = max(self.done, self.n - out)
    def wait_all(self):
        if self.done < self.n:
            self.p(f"s_waitcnt {self.name}(0)"); self.done = self.n
    def reset(self):
        self.n = 0; self.done = 0; self.tags = {}
```

```python
from asm import *
NAME = 'parallel_sum__softmax_full_mha__dense_activation_squared_relu__prompt'
Q_OFF  = 0x000000
KV_OFF = 0x200000
H_OFF  = 0x600000
O_OFF  = 0xE00000
FLAG_OFF = 0x1000000
WS_SIZE = 0x10000000
X_BYTES = 2048*448*2
WQKV_BYTES = 448*1344*2
WO_BYTES = 448*448*2
W1_BYTES = 448*1792*2
W2_BYTES = 1792*448*2
QSCALE = (28 ** -0.5) * 1.4426950408889634

import struct
def f2u(f): return struct.unpack('<I', struct.pack('<f', f))[0]

def srd(p, d, base, size):
    p(f"s_mov_b32 s{d}, s{base}")
    p(f"s_and_b32 s{d+1}, s{base+1}, 0xffff")
    p(f"s_mov_b32 s{d+2}, {hex(size)}")
    p(f"s_mov_b32 s{d+3}, 0x00020000")

def header(launches):
    s = open('cdna_kernels/' + NAME + '.s.ref').read().split('\n')
    out = []
    for l in s:
        if l.startswith('; @launch') or l.startswith('; Override') or l.startswith('; grid='): continue
        if not l.startswith(';'): break
        out.append(l)
    out += launches
    return '\n'.join(out) + '\n.amdgcn_target "amdgcn-amd-amdhsa--gfx950"\n.text\n'

def kernel_text(name, body):
    return f".globl {name}\n.p2align 8\n.type {name},@function\n{name}:\n{body}"

def kd(name, vgpr=256, sgpr=102, accum=None):
    accum = accum or ((vgpr + 3) // 4 * 4)
    return f""".amdhsa_kernel {name}
  .amdhsa_next_free_vgpr {vgpr}
  .amdhsa_next_free_sgpr {sgpr}
  .amdhsa_accum_offset {accum}
  .amdhsa_group_segment_fixed_size 0
  .amdhsa_kernarg_size 88
  .amdhsa_user_sgpr_count 2
  .amdhsa_user_sgpr_kernarg_segment_ptr 1
  .amdhsa_system_sgpr_workgroup_id_x 1
  .amdhsa_float_denorm_mode_32 3
.end_amdhsa_kernel
"""

def dma(p, voff, srd_, soff, m0expr_sreg, m0_add=0, mods=""):
    if m0_add: p(f"s_add_u32 m0, s{m0expr_sreg}, {m0_add}")
    else: p(f"s_mov_b32 m0, s{m0expr_sreg}")
    p("s_nop 0")
    p(f"buffer_load_dwordx4 v{voff}, s[{srd_}:{srd_+3}], {soff} offen lds{(' ' + mods) if mods else ''}")
```

```python
from common import *

XA = 0; RING = 114688; TAB = 151552
TAB_CSQ = TAB; TAB_CSF = TAB + 512; TAB_B1 = TAB + 1024
LDS_K1 = 163840

sX, sWQ, sW1, sWS, sB1 = 4, 8, 12, 16, 20
sJ, sC, sW, sHW = 24, 25, 26, 27
sONES = 40; sMHI = 42
vLANE = 1
vXA = 2
vWA = 6
vW1A, vW1B = 7, 8
vXD = 9
vSUM = 13; vSUM2 = 14; vSQ = 15; vSQ2 = 232
vR = 9; vNMU = 10; vTABA = 11; vLIN = 12
vX = 16
vACC = 128
vWF = 208
vT = 233

def wave_setup(p):
    p(f"v_and_b32 v{vLANE}, 63, v0")
    p(f"v_lshrrev_b32 v2, 6, v0")
    p("s_nop 0")
    p(f"v_readfirstlane_b32 s{sW}, v2")

def emit_ids(p):
    p("s_and_b32 s38, s2, 7"); p("s_lshr_b32 s39, s2, 3")
    p("s_lshr_b32 s41, s38, 1"); p("s_lshl_b32 s41, s41, 2"); p("s_and_b32 s44, s39, 3"); p(f"s_add_u32 s{sJ}, s41, s44")
    p("s_and_b32 s41, s38, 1"); p("s_lshl_b32 s41, s41, 3"); p("s_lshr_b32 s44, s39, 2"); p(f"s_add_u32 s{sC}, s41, s44")

def bf16_round(p, dst, src, tmp):
    p(f"v_cvt_pk_bf16_f32 v{tmp}, v{src}, v{src}")
    p(f"v_lshlrev_b32 v{dst}, 16, v{tmp}")

def tr_lane_terms(p, vrow, vcolb, t0):
    L = vLANE
    p(f"v_lshrrev_b32 v{t0}, 5, v{L}"); p(f"v_lshlrev_b32 v{t0}, 3, v{t0}")
    p(f"v_bfe_u32 v{vrow}, v{L}, 2, 2"); p(f"v_add_u32 v{vrow}, v{vrow}, v{t0}")
    p(f"v_bfe_u32 v{t0}, v{L}, 4, 1"); p(f"v_lshlrev_b32 v{t0}, 5, v{t0}")
    p(f"v_and_b32 v{vcolb}, 3, v{L}"); p(f"v_lshlrev_b32 v{vcolb}, 3, v{vcolb}"); p(f"v_add_u32 v{vcolb}, v{vcolb}, v{t0}")

def w128_tr_addr(p, dst, t0, t1, t2):
    L = vLANE
    tr_lane_terms(p, t0, t1, t2)
    p(f"v_bfe_u32 v{t2}, v{L}, 3, 1"); p(f"v_lshlrev_b32 v{t2}, 6, v{t2}")
    p(f"v_xor_b32 v{t1}, v{t1}, v{t2}")
    p(f"v_lshlrev_b32 v{dst}, 7, v{t0}"); p(f"v_add_u32 v{dst}, v{dst}, v{t1}")

def w128_dma_voff(p, dst, stride, t0, t1):
    L = vLANE
    p(f"v_lshrrev_b32 v{t0}, 3, v{L}"); p(f"v_mul_u32_u24 v{dst}, {stride}, v{t0}")
    p(f"v_bfe_u32 v{t0}, v{L}, 4, 1"); p(f"v_lshlrev_b32 v{t0}, 2, v{t0}")
    p(f"v_and_b32 v{t1}, 7, v{L}"); p(f"v_xor_b32 v{t1}, v{t1}, v{t0}"); p(f"v_lshlrev_b32 v{t1}, 4, v{t1}")
    p(f"v_add_u32 v{dst}, v{dst}, v{t1}")

def half_sum(p, reg, t1, t2):
    p(f"v_mov_b32 v{t1}, v{reg}"); p(f"v_mov_b32 v{t2}, v{reg}")
    p(f"v_permlane32_swap_b32 v{t1}, v{t2}")
    p(f"v_add_f32 v{reg}, v{t1}, v{t2}")

def emit_compute(p, st_mods=""):
    L = vLANE
    for rg in range(4):
        p(f"v_lshrrev_b32 v{vT}, 4, v{L}");
        if rg & 1: p(f"v_add_u32 v{vT}, 4, v{vT}")
        p(f"v_and_b32 v{vT+1}, 7, v{L}"); p(f"v_xor_b32 v{vT}, v{vT}, v{vT+1}"); p(f"v_lshlrev_b32 v{vT}, 4, v{vT}")
        p(f"v_lshrrev_b32 v{vT+1}, 3, v{L}"); p(f"v_mul_u32_u24 v{vT+1}, 896, v{vT+1}")
        if rg: p(f"v_add_u32 v{vT}, {rg*7168}, v{vT}")
        p(f"v_add_u32 v{vXD+rg}, v{vT}, v{vT+1}")
    p(f"s_lshl_b32 s44, s{sJ}, 2"); p(f"s_add_u32 s44, s44, s{sW}"); p(f"s_mul_i32 s44, s44, {32*896}")
    p(f"s_lshl_b32 s46, s{sW}, 12"); p(f"s_mov_b32 m0, s46")
    p("s_mov_b32 s45, 7")
    p.label("L_xdma")
    for rg in range(4):
        p(f"buffer_load_dwordx4 v{vXD+rg}, s[{sX}:{sX+3}], s44 offen lds")
        p(f"s_add_u32 m0, m0, {1024 if rg < 3 else 16384-3072}")
        if rg < 3: p("s_nop 0")
    p("s_add_u32 s44, s44, 128"); p("s_sub_u32 s45, s45, 1"); p("s_cmp_lg_u32 s45, 0"); p("s_cbranch_scc1 L_xdma")
    p(f"v_and_b32 v{vT}, 31, v{L}"); p(f"v_lshlrev_b32 v{vT+1}, 7, v{vT}"); p(f"v_add_u32 v{vT+1}, s46, v{vT+1}")
    p(f"v_bfe_u32 v{vT}, v{L}, 1, 3"); p(f"v_lshrrev_b32 v{vT+2}, 5, v{L}"); p(f"v_xor_b32 v{vT}, v{vT}, v{vT+2}")
    for q in range(4):
        p(f"v_xor_b32 v{vT+2}, {2*q}, v{vT}"); p(f"v_lshlrev_b32 v{vT+2}, 4, v{vT+2}"); p(f"v_add_u32 v{vXA+q}, v{vT+1}, v{vT+2}")
    tr_lane_terms(p, vT, vT+1, vT+2)
    p(f"v_mul_u32_u24 v{vT}, 192, v{vT}"); p(f"v_add_u32 v{vT}, v{vT}, v{vT+1}")
    p(f"s_and_b32 s44, s{sC}, 1"); p("s_lshl_b32 s44, s44, 3"); p(f"s_add_u32 s44, s44, {RING}")
    p(f"v_add_u32 v{vWA}, s44, v{vT}")
    w128_tr_addr(p, vW1A, vT, vT+1, vT+2); p(f"v_xor_b32 v{vW1B}, 64, v{vW1A}")
    for r in (vSUM, vSUM2, vSQ, vSQ2): p(f"v_mov_b32 v{r}, 0")
    lg = Cnt(p, "lgkmcnt", 15)
    def reads(kk):
        kc, q = kk // 4, kk % 4
        off = kc * 16384
        if kk == 16:
            for qq in range(4): p(f"v_add_u32 v{vXA+qq}, 0x10000, v{vXA+qq}")
        if kc >= 4: off -= 65536
        lg.issue(f"ds_read_b128 v[{vX+4*kk}:{vX+4*kk+3}], v{vXA+q} offset:{off}")
        slot = (kc % 3) * 4 + q
        b = vWF + 12 * (kk & 1)
        for t in range(3):
            o = slot * 3072 + 56 * t
            lg.issue(f"ds_read_b64_tr_b16 v[{b+4*t}:{b+4*t+1}], v{vWA} offset:{o}")
            lg.issue(f"ds_read_b64_tr_b16 v[{b+4*t+2}:{b+4*t+3}], v{vWA} offset:{o+768}", tag=("k", kk))
    def mfmas(kk):
        b = vWF + 12 * (kk & 1); x = vX + 4 * kk
        st = [f"v_dot2c_f32_bf16 v{vSUM if i % 2 == 0 else vSUM2}, s{sONES}, v{x+i}" for i in range(4)] + \
             [f"v_dot2c_f32_bf16 v{vSQ if i % 2 == 0 else vSQ2}, v{x+i}, v{x+i}" for i in range(4)]
        st = [st[0], st[4], st[1], st[5], st[2], st[6], st[3], st[7]]
        for t in range(3):
            a = vACC + 16 * t
            c = "0" if kk == 0 else f"v[{a}:{a+15}]"
            p(f"v_mfma_f32_32x32x16_bf16 v[{a}:{a+15}], v[{b+4*t}:{b+4*t+3}], v[{x}:{x+3}], {c}")
            for s_ in st[3*t:3*t+3]: p(s_)
    for g in range(7):
        lg.wait_all()
        p(f"s_waitcnt vmcnt({24-4*g})")
        p("s_barrier")
        reads(4*g)
        if g > 0: mfmas(4*g - 1)
        for q in range(1, 4):
            reads(4*g + q)
            lg.wait(("k", 4*g + q - 1))
            mfmas(4*g + q - 1)
    lg.wait_all()
    mfmas(27)
    t = vT
    p("s_nop 1")
    p(f"v_add_f32 v{vSUM}, v{vSUM}, v{vSUM2}"); p(f"v_add_f32 v{vSQ}, v{vSQ}, v{vSQ2}")
    half_sum(p, vSUM, t, t+1); half_sum(p, vSQ, t, t+1)
    p(f"v_mul_f32 v{vSUM}, {hex(f2u(1/448))}, v{vSUM}"); p(f"v_mul_f32 v{vSQ}, {hex(f2u(1/448))}, v{vSQ}")
    p(f"v_fma_f32 v{vSQ}, -v{vSUM}, v{vSUM}, v{vSQ}"); p(f"v_max_f32 v{vSQ}, 0, v{vSQ}")
    bf16_round(p, vSUM, vSUM, t); bf16_round(p, vSQ, vSQ, t)
    p(f"v_add_f32 v{vSQ}, {hex(f2u(1e-5))}, v{vSQ}"); bf16_round(p, vSQ, vSQ, t)
    p(f"v_sqrt_f32 v{vSQ}, v{vSQ}"); bf16_round(p, vSQ, vSQ, t)
    p(f"v_rcp_f32 v{vR}, v{vSQ}"); p(f"v_sub_f32 v{vNMU}, 0, v{vSUM}")
    p(f"v_lshrrev_b32 v{t}, 5, v{L}"); p(f"v_lshlrev_b32 v{t}, 4, v{t}"); p(f"v_add_u32 v{vTABA}, {TAB}, v{t}")
    p(f"v_lshlrev_b32 v{vLIN}, 4, v{L}")
    vVO = vSUM2
    p(f"v_and_b32 v{vVO}, 31, v{L}"); p(f"v_lshlrev_b32 v{vVO}, 6, v{vVO}"); p(f"v_add_u32 v{vVO}, v{vVO}, v{t}"); p(f"v_add_u32 v{vVO}, 2048, v{vVO}")
    p("s_barrier")
    lg.reset()
    CS = vWF
    P = vWF + 16
    p(f"s_lshl_b32 s47, s{sJ}, 2"); p(f"s_add_u32 s47, s47, s{sW}")
    for tt in range(3):
        a = vACC + 16 * tt
        for aa in range(4):
            lg.issue(f"ds_read_b128 v[{CS+4*aa}:{CS+4*aa+3}], v{vTABA} offset:{(32*tt + 8*aa)*4}", tag=("cs", tt, aa))
        p(f"s_mul_i32 s48, s{sC}, 3"); p(f"s_add_u32 s48, s48, {tt}")
        p("s_lshr_b32 s49, s48, 4"); p("s_and_b32 s48, s48, 15")
        p("s_lshl_b32 s48, s48, 6"); p("s_add_u32 s48, s48, s47")
        p("s_lshl_b32 s50, s48, 11"); p("s_lshl_b32 s51, s48, 12"); p(f"s_add_u32 s51, s51, {KV_OFF}")
        p("s_cmp_eq_u32 s49, 0")
        p("s_cselect_b32 s50, s50, s51")
        p(f"s_cselect_b32 s52, {hex(f2u(QSCALE))}, 1.0")
        p("s_cmp_eq_u32 s49, 2")
        p("s_cselect_b64 vcc, -1, 0")
        p(f"s_cselect_b32 s53, 32, 1024")
        p(f"v_mul_f32 v{t}, s52, v{vR}")
        p(f"v_cndmask_b32 v{t+1}, v{vLIN}, v{vVO}, vcc")
        p(f"v_add_u32 v{t+2}, s53, v{t+1}")
        for aa in range(4):
            lg.wait(("cs", tt, aa))
            for b in range(4): p(f"v_fmac_f32 v{a+4*aa+b}, v{vNMU}, v{CS+4*aa+b}")
            for b in range(4): p(f"v_mul_f32 v{a+4*aa+b}, v{t}, v{a+4*aa+b}")
            for pp in range(2): p(f"v_cvt_pk_bf16_f32 v{P+2*aa+pp}, v{a+4*aa+2*pp}, v{a+4*aa+2*pp+1}")
        p(f"s_mov_b64 exec, s[{sMHI}:{sMHI+1}]")
        p(f"v_mov_b32 v{P+6}, 0x3f803f80"); p(f"v_mov_b32 v{P+7}, 0")
        p("s_mov_b64 exec, -1")
        p(f"buffer_store_dwordx4 v[{P}:{P+3}], v{t+1}, s[{sWS}:{sWS+3}], s50 offen {st_mods}")
        p(f"buffer_store_dwordx4 v[{P+4}:{P+7}], v{t+2}, s[{sWS}:{sWS+3}], s50 offen {st_mods}")
        p("s_nop 1")
    p(f"s_cmp_ge_u32 s{sC}, 14"); p("s_cbranch_scc1 L_k1_done")
    accA, accB = 176, 192
    WB = 208
    NB = 5
    E = 128
    p("s_mov_b32 s54, 0")
    p(f"s_mul_i32 s55, s47, 56"); p(f"s_lshl_b32 s56, s{sC}, 2"); p("s_add_u32 s55, s55, s56"); p("s_lshl_b32 s55, s55, 11")
    p(f"s_add_u32 s55, s55, {H_OFF - 2048}")
    p(f"v_add_u32 v{vTABA}, {TAB_CSF - TAB - 128}, v{vTABA}")
    def epi_stream(acc, lgc):
        ops = []
        def rd(aa):
            bb = aa & 1
            ops.append(lambda: lgc.issue(f"ds_read_b128 v[{E+4*bb}:{E+4*bb+3}], v{vTABA} offset:{32*aa}"))
            ops.append(lambda: lgc.issue(f"ds_read_b128 v[{E+8+4*bb}:{E+8+4*bb+3}], v{vTABA} offset:{512+32*aa}", tag=("e", aa)))
        rd(0); rd(1)
        for aa in range(4):
            bb = aa & 1; cs = E + 4*bb; b1 = E + 8 + 4*bb
            ops.append(lambda aa=aa: lgc.wait(("e", aa)))
            for b in range(4): ops.append(lambda x=f"v_fmac_f32 v{acc+4*aa+b}, v{vNMU}, v{cs+b}": p(x))
            for b in range(4): ops.append(lambda x=f"v_fmac_f32 v{b1+b}, v{acc+4*aa+b}, v{vR}": p(x))
            for b in range(4): ops.append(lambda x=f"v_max_f32 v{b1+b}, 0, v{b1+b}": p(x))
            for b in range(4): ops.append(lambda x=f"v_mul_f32 v{b1+b}, v{b1+b}, v{b1+b}": p(x))
            for pp in range(2): ops.append(lambda x=f"v_cvt_pk_bf16_f32 v{E+16+2*aa+pp}, v{b1+2*pp}, v{b1+2*pp+1}": p(x))
            if aa + 2 < 4: rd(aa + 2)
        return ops
    def epi_store(skip_label=None):
        p(f"buffer_store_dwordx4 v[{E+16}:{E+19}], v{vLIN}, s[{sWS}:{sWS+3}], s55 offen {st_mods}")
        p(f"buffer_store_dwordx4 v[{E+20}:{E+23}], v{vLIN}, s[{sWS}:{sWS+3}], s55 offen offset:1024 {st_mods}")
    def tile_pass(acc, vaddr, other, cond_first):
        lgc = Cnt(p, "lgkmcnt", 15)
        p("s_barrier")
        def rd(kk):
            b = WB + 4 * (kk % NB)
            lgc.issue(f"ds_read_b64_tr_b16 v[{b}:{b+1}], v{vaddr} offset:{kk*2048}")
            lgc.issue(f"ds_read_b64_tr_b16 v[{b+2}:{b+3}], v{vaddr} offset:{kk*2048+512}", tag=("w", kk))
        for kk in range(NB - 1): rd(kk)
        ops = epi_stream(other, lgc)
        for kk in range(28):
            if kk + NB - 1 < 28: rd(kk + NB - 1)
            lgc.wait(("w", kk))
            b = WB + 4 * (kk % NB); x = vX + 4 * kk
            c = "0" if kk == 0 else f"v[{acc}:{acc+15}]"
            p(f"v_mfma_f32_32x32x16_bf16 v[{acc}:{acc+15}], v[{b}:{b+3}], v[{x}:{x+3}], {c}")
            if kk >= 1:
                n = 0
                while ops and n < 4:
                    ops.pop(0)(); n += 1
        while ops: ops.pop(0)()
        lgc.wait_all()
        if cond_first:
            lab = p.newlabel("L_skipst")
            p("s_cmp_eq_u32 s54, 0"); p(f"s_cbranch_scc1 {lab}")
            epi_store(); p.label(lab)
        else:
            epi_store()
        p("s_add_u32 s55, s55, 2048"); p(f"v_add_u32 v{vTABA}, 128, v{vTABA}")
    p.label("L_ffn1")
    tile_pass(accA, vW1A, accB, True)
    tile_pass(accB, vW1B, accA, False)
    p(f"v_add_u32 v{vW1A}, 57344, v{vW1A}"); p(f"v_add_u32 v{vW1B}, 57344, v{vW1B}")
    p("s_add_u32 s54, s54, 1"); p("s_cmp_lt_u32 s54, 2"); p("s_cbranch_scc1 L_ffn1")
    lgc = Cnt(p, "lgkmcnt", 15)
    p("s_nop 7")
    for op in epi_stream(accB, lgc): op()
    epi_store()
    p("s_branch L_k1_done")

def emit_helper(p):
    L = vLANE
    p(f"s_sub_u32 s{sHW}, s{sW}, 4")
    vD = 2
    vD1 = 5; vA = 6; vCS = 7; vF = 8
    t = 20
    for i in range(3):
        p(f"v_lshlrev_b32 v{t}, 4, v{L}");
        if i: p(f"v_add_u32 v{t}, {i*1024}, v{t}")
        p(f"v_lshrrev_b32 v{t+1}, 6, v{t}"); p(f"v_mul_u32_u24 v{t+1}, 43, v{t+1}"); p(f"v_lshrrev_b32 v{t+1}, 7, v{t+1}")
        p(f"v_mul_u32_u24 v{t+2}, 192, v{t+1}"); p(f"v_sub_u32 v{t+2}, v{t}, v{t+2}")
        p(f"v_mul_u32_u24 v{t+1}, 2688, v{t+1}"); p(f"v_add_u32 v{vD+i}, v{t+1}, v{t+2}")
    p(f"s_mul_i32 s44, s{sHW}, {16*2688}"); p(f"s_mul_i32 s45, s{sC}, 168"); p("s_add_u32 s44, s44, s45")
    p(f"s_and_b32 s45, s{sC}, 1"); p("s_lshl_b32 s45, s45, 3"); p("s_sub_u32 s44, s44, s45")
    p(f"s_mul_i32 s46, s{sHW}, 3072"); p(f"s_add_u32 s46, s46, {RING}")
    vm = Cnt(p, "vmcnt", 63)
    def wq_group(g):
        for i in range(3):
            p(f"s_add_u32 m0, s46, {(g % 3)*4*3072 + i*1024}")
            p(f"s_add_u32 s47, s44, {g*4*16*2688}")
            vm.issue(f"buffer_load_dwordx4 v{vD+i}, s[{sWQ}:{sWQ+3}], s47 offen lds", tag=("g", g))
    for g in range(3): wq_group(g)
    p(f"s_lshl_b32 s48, s{sC}, 8"); p(f"v_lshlrev_b32 v{t}, 2, v{L}")
    w128_dma_voff(p, vD1, 3584, t+1, t+2)
    tr_lane_terms(p, t+1, t+2, t+3)
    p(f"v_mul_u32_u24 v{t+1}, 192, v{t+1}"); p(f"v_add_u32 v{t+1}, v{t+1}, v{t+2}")
    p(f"s_and_b32 s45, s{sC}, 1"); p("s_lshl_b32 s45, s45, 3"); p(f"s_mul_i32 s49, s{sHW}, 56"); p("s_add_u32 s45, s45, s49"); p(f"s_add_u32 s45, s45, {RING}")
    p(f"v_add_u32 v{vA}, s45, v{t+1}")
    p(f"v_mov_b32 v{vCS}, 0")
    p(f"s_mul_i32 s50, s{sHW}, {8*3584}"); p(f"s_lshl_b32 s51, s{sC}, 8"); p("s_add_u32 s50, s50, s51")
    p(f"s_lshl_b32 s51, s{sHW}, 10")
    def w1_half(half):
        lab = p.newlabel("L_w1dma")
        p(f"s_add_u32 s52, s50, {128*half}"); p(f"s_add_u32 s53, s51, {57344*half}"); p("s_mov_b32 s54, 14")
        p.label(lab)
        p("s_mov_b32 m0, s53"); p("s_add_u32 s53, s53, 4096")
        p(f"buffer_load_dwordx4 v{vD1}, s[{sW1}:{sW1+3}], s52 offen lds")
        p(f"s_add_u32 s52, s52, {32*3584}"); p("s_sub_u32 s54, s54, 1"); p("s_cmp_lg_u32 s54, 0"); p(f"s_cbranch_scc1 {lab}")
        vm.n += 14; vm.tags[("w1", half)] = vm.n
    lg = Cnt(p, "lgkmcnt", 15)
    for g in range(7):
        vm.wait(("g", g))
        p("s_barrier")
        if g >= 1 and g + 2 <= 6: wq_group(g + 2)
        if g == 4: w1_half(0)
        for q in range(4):
            o = ((g % 3) * 4 + q) * 3072
            lg.issue(f"ds_read_b64_tr_b16 v[{vF+4*(q&1)}:{vF+4*(q&1)+1}], v{vA} offset:{o}")
            lg.issue(f"ds_read_b64_tr_b16 v[{vF+4*(q&1)+2}:{vF+4*(q&1)+3}], v{vA} offset:{o+768}", tag=("c", g, q))
            if q >= 1:
                lg.wait(("c", g, q-1))
                for i in range(4): p(f"v_dot2c_f32_bf16 v{vCS}, s{sONES}, v{vF+4*((q-1)&1)+i}")
        lg.wait_all()
        for i in range(4): p(f"v_dot2c_f32_bf16 v{vCS}, s{sONES}, v{vF+4+i}")
    return vm, lg, vD1, vA, vCS, vF, t, w1_half

def emit_helper2(p, ctx):
    vm, lg, vD1, vA, vCS, vF, t, w1_half = ctx
    L = vLANE
    def cs_write(tab_off_sreg):
        p("s_nop 2")
        half_sum(p, vCS, t, t+1)
        p(f"v_and_b32 v{t}, 31, v{L}"); p(f"v_lshlrev_b32 v{t}, 2, v{t}"); p(f"v_add_u32 v{t}, s{tab_off_sreg}, v{t}")
        p(f"ds_write_b32 v{t}, v{vCS}")
        p("s_waitcnt lgkmcnt(0)")
    p(f"s_lshl_b32 s55, s{sHW}, 7"); p(f"s_add_u32 s55, s55, {TAB_CSQ}")
    cs_write(55)
    p("s_barrier")
    p(f"s_cmp_ge_u32 s{sC}, 14"); p("s_cbranch_scc1 L_k1_done")
    p(f"v_lshlrev_b32 v{t}, 2, v{L}")
    p(f"buffer_load_dword v{t+1}, v{t}, s[{sB1}:{sB1+3}], s48 offen")
    w1_half(1)
    p("s_waitcnt vmcnt(14)")
    p(f"v_lshlrev_b32 v{t+2}, 16, v{t+1}"); p(f"v_and_b32 v{t+3}, 0xffff0000, v{t+1}")
    p(f"v_lshlrev_b32 v{t}, 3, v{L}"); p(f"v_add_u32 v{t}, {TAB_B1}, v{t}")
    p(f"ds_write_b64 v{t}, v[{t+2}:{t+3}]")
    p("s_waitcnt lgkmcnt(0)")
    w128_tr_addr(p, vA, t, t+1, t+2)
    p(f"s_and_b32 s56, s{sHW}, 1"); p("s_lshl_b32 s56, s56, 6"); p(f"v_xor_b32 v{vA}, s56, v{vA}")
    p(f"s_lshr_b32 s56, s{sHW}, 1"); p("s_mul_i32 s57, s56, 57344"); p(f"v_add_u32 v{vA}, s57, v{vA}")
    p(f"s_lshl_b32 s55, s{sHW}, 7"); p(f"s_add_u32 s55, s55, {TAB_CSF}")
    def cs_loop():
        lab = p.newlabel("L_cs")
        p(f"v_mov_b32 v{vCS}, 0"); p("s_mov_b32 s58, 28"); p(f"v_mov_b32 v{t+4}, v{vA}")
        p.label(lab)
        p(f"ds_read_b64_tr_b16 v[{vF}:{vF+1}], v{t+4}"); p(f"ds_read_b64_tr_b16 v[{vF+2}:{vF+3}], v{t+4} offset:512")
        p(f"v_add_u32 v{t+4}, 2048, v{t+4}")
        p("s_waitcnt lgkmcnt(0)")
        for i in range(4): p(f"v_dot2c_f32_bf16 v{vCS}, s{sONES}, v{vF+i}")
        p("s_sub_u32 s58, s58, 1"); p("s_cmp_lg_u32 s58, 0"); p(f"s_cbranch_scc1 {lab}")
        cs_write(55)
    p("s_barrier")
    l1 = p.newlabel("L_h"); p("s_cmp_lg_u32 s56, 0"); p(f"s_cbranch_scc1 {l1}"); cs_loop(); p.label(l1)
    p("s_barrier")
    p("s_waitcnt vmcnt(0)")
    p("s_barrier")
    l2 = p.newlabel("L_h"); p("s_cmp_eq_u32 s56, 0"); p(f"s_cbranch_scc1 {l2}"); cs_loop(); p.label(l2)
    p("s_barrier")

def emit_k1(name):
    p = Prog()
    p("s_cmp_ge_u32 s2, 256"); p("s_cbranch_scc1 L_k1_end")
    p("s_load_dwordx4 s[28:31], s[0:1], 0"); p("s_load_dwordx4 s[32:35], s[0:1], 32"); p("s_load_dwordx2 s[36:37], s[0:1], 80")
    wave_setup(p); emit_ids(p)
    p(f"s_mov_b32 s{sONES}, 0x3f803f80"); p(f"s_mov_b32 s{sMHI}, 0"); p(f"s_mov_b32 s{sMHI+1}, -1")
    p("s_waitcnt lgkmcnt(0)")
    srd(p, sX, 28, X_BYTES); srd(p, sWQ, 30, WQKV_BYTES); srd(p, sW1, 32, W1_BYTES); srd(p, sB1, 34, 3584); srd(p, sWS, 36, WS_SIZE)
    p(f"s_cmp_ge_u32 s{sW}, 4"); p("s_cbranch_scc1 L_k1_helper")
    emit_compute(p)
    p.label("L_k1_helper")
    ctx = emit_helper(p)
    emit_helper2(p, ctx)
    p.label("L_k1_done")
    p("s_waitcnt vmcnt(0)")
    p.label("L_k1_end")
    p("s_endpgm")
    return p

if __name__ == "__main__":
    p = emit_k1("k1_kernel")
    txt = p.finalize(verbose=True)
    print("nops:", p.nops_inserted, "lines:", txt.count("\n"))
```

```python
from common import *
from k1 import wave_setup, half_sum, vLANE

sWS = 16
sKV = 20
sW = 26; sHEAD = 24; sJ = 25; sKH = 27; sQT = 38
sMHI = 42
LDS_K2 = 65536 + 1024
FLAG_LDS = 65536
vQ0, vQ1 = 16, 20
vK0, vK1 = 24, 28
vV0 = 32; vV1 = [36, 40]
vS = [44, 60]
vP = 76
vO = 84
vKA = 2; vVA = 3; vDV = 4; vDV2 = 5
vT = 100
OFFSET = 90.0
LIMIT = 2.0 ** 110

def ids_attn(p):
    p("s_and_b32 s44, s2, 7"); p("s_lshr_b32 s45, s2, 3")
    p(f"s_lshl_b32 s{sHEAD}, s44, 1"); p("s_lshr_b32 s46, s45, 4"); p(f"s_add_u32 s{sHEAD}, s{sHEAD}, s46")
    p(f"s_and_b32 s{sJ}, s45, 15")
    p(f"s_lshr_b32 s{sKH}, s{sW}, 2"); p(f"s_and_b32 s{sQT}, s{sW}, 3")

def set_m(p, vmax, t):
    p(f"v_add_f32 v{t}, {hex(f2u(OFFSET))}, v{vmax}"); p(f"v_sub_f32 v{t}, 0, v{t}")
    p(f"v_cvt_pk_bf16_f32 v{t+1}, v{t}, v{t}"); p(f"v_lshlrev_b32 v{t+2}, 16, v{t+1}")
    p(f"v_sub_f32 v{t+2}, v{t}, v{t+2}")
    p(f"v_lshlrev_b32 v{t+1}, 16, v{t+1}")
    p(f"v_cvt_pk_bf16_f32 v{t+1}, v{t+1}, v{t+2}")
    p(f"s_mov_b64 exec, s[{sMHI}:{sMHI+1}]"); p(f"v_mov_b32 v{vQ1+2}, v{t+1}"); p("s_mov_b64 exec, -1")

def tile_max(p, S, dst, t, init=True):
    p(f"v_max3_f32 v{t}, v{S}, v{S+1}, v{S+2}")
    for i in range(3, 15, 2): p(f"v_max3_f32 v{t}, v{t}, v{S+i}, v{S+i+1}")
    if init: p(f"v_max_f32 v{dst}, v{t}, v{S+15}")
    else: p(f"v_max3_f32 v{dst}, v{dst}, v{t}, v{S+15}")

def cross_half_max(p, reg, t):
    p(f"v_mov_b32 v{t}, v{reg}"); p(f"v_mov_b32 v{t+1}, v{reg}")
    p(f"v_permlane32_swap_b32 v{t}, v{t+1}")
    p(f"v_max_f32 v{reg}, v{t}, v{t+1}")

def dma_step(p, slot, sSO, sM0, extra=None):
    p(f"s_add_u32 m0, s{sM0}, {slot*16384}")
    if extra: extra()
    else: p("s_nop 0")
    p(f"buffer_load_dwordx4 v{vDV}, s[{sKV}:{sKV+3}], s{sSO} offen lds")
    p(f"s_add_u32 m0, s{sM0}, {slot*16384+1024}")
    p("s_nop 0")
    p(f"buffer_load_dwordx4 v{vDV2}, s[{sKV}:{sKV+3}], s{sSO} offen lds")

def emit_attention(p, st_mods="", pre_wait=None, mid_hook=None):
    L = vLANE
    sSO0 = 48; sSO = 49; sM0 = 50; sIT = 51; sRETRY = 52; sBIG = 53
    p(f"v_lshlrev_b32 v{vDV}, 4, v{L}"); p(f"v_add_u32 v{vDV2}, 1024, v{vDV}")
    p(f"s_lshl_b32 s44, s{sKH}, 13")
    p(f"v_add_u32 v{vKA}, s44, v{vDV}")
    t = vT
    p(f"v_lshrrev_b32 v{t}, 5, v{L}"); p(f"v_lshlrev_b32 v{t}, 2, v{t}"); p(f"v_bfe_u32 v{t+1}, v{L}, 2, 2"); p(f"v_add_u32 v{t}, v{t}, v{t+1}")
    p(f"v_lshlrev_b32 v{t}, 6, v{t}")
    p(f"v_bfe_u32 v{t+1}, v{L}, 4, 1"); p(f"v_lshlrev_b32 v{t+1}, 5, v{t+1}"); p(f"v_add_u32 v{t}, v{t}, v{t+1}")
    p(f"v_and_b32 v{t+1}, 1, v{L}"); p(f"v_lshlrev_b32 v{t+1}, 4, v{t+1}"); p(f"v_add_u32 v{t}, v{t}, v{t+1}")
    p(f"v_bfe_u32 v{t+1}, v{L}, 1, 1"); p(f"v_lshlrev_b32 v{t+1}, 3, v{t+1}"); p(f"v_add_u32 v{t}, v{t}, v{t+1}")
    p("s_add_u32 s44, s44, 2048"); p(f"v_add_u32 v{vVA}, s44, v{t}")
    p(f"s_lshl_b32 s44, s{sHEAD}, 6"); p(f"s_lshl_b32 s45, s{sKH}, 5"); p("s_add_u32 s44, s44, s45"); p("s_lshl_b32 s44, s44, 12")
    p(f"s_lshl_b32 s45, s{sQT}, 11"); p("s_add_u32 s44, s44, s45"); p(f"s_add_u32 s{sSO0}, s44, {KV_OFF}")
    p(f"s_lshl_b32 s{sM0}, s{sKH}, 13"); p(f"s_add_u32 s{sM0}, s{sM0}, s45")
    for i in range(4): p(f"s_mov_b32 s{sKV+i}, s{sWS+i}")
    p(f"v_mov_b32 v{t}, {FLAG_LDS}"); p(f"v_mov_b32 v{t+1}, 0"); p(f"ds_write_b32 v{t}, v{t+1}")
    if pre_wait: pre_wait()
    p(f"s_lshl_b32 s44, s{sHEAD}, 6"); p(f"s_lshl_b32 s45, s{sJ}, 2"); p("s_add_u32 s44, s44, s45"); p(f"s_add_u32 s44, s44, s{sQT}")
    p("s_lshl_b32 s44, s44, 11")
    p(f"buffer_load_dwordx4 v[{vQ0}:{vQ0+3}], v{vDV}, s[{sWS}:{sWS+3}], s44 offen")
    p(f"buffer_load_dwordx4 v[{vQ1}:{vQ1+3}], v{vDV2}, s[{sWS}:{sWS+3}], s44 offen")
    p(f"s_mov_b32 s{sRETRY}, 0")
    def start_dma():
        p(f"s_mov_b32 s{sSO}, s{sSO0}"); p(f"s_mov_b32 s{sKV+2}, s{sWS+2}")
        for s_ in range(3):
            dma_step(p, s_, sSO, sM0); p(f"s_add_u32 s{sSO}, s{sSO}, 8192")
    start_dma()
    p("s_waitcnt vmcnt(4) lgkmcnt(0)")
    p(f"s_mov_b64 exec, s[{sMHI}:{sMHI+1}]"); p(f"v_mov_b32 v{vQ1+2}, 0"); p("s_mov_b64 exec, -1")
    p("s_barrier")
    p(f"ds_read_b128 v[{vK0}:{vK0+3}], v{vDV}"); p(f"ds_read_b128 v[{vK1}:{vK1+3}], v{vDV} offset:1024")
    p("s_waitcnt lgkmcnt(0)")
    S = vS[0]
    p(f"v_mfma_f32_32x32x16_bf16 v[{S}:{S+15}], v[{vK0}:{vK0+3}], v[{vQ0}:{vQ0+3}], 0")
    p(f"v_mfma_f32_32x32x16_bf16 v[{S}:{S+15}], v[{vK1}:{vK1+3}], v[{vQ1}:{vQ1+3}], v[{S}:{S+15}]")
    tile_max(p, S, t+4, t); cross_half_max(p, t+4, t); set_m(p, t+4, t)
    p.label("L_att_main")
    p("s_waitcnt vmcnt(2)"); p("s_barrier")
    lg = Cnt(p, "lgkmcnt", 15)
    def koff(tg): return ((tg // 2) % 4) * 16384 + (tg % 2) * 4096
    def rdK(tg):
        lg.issue(f"ds_read_b128 v[{vK0}:{vK0+3}], v{vKA} offset:{koff(tg)}")
        lg.issue(f"ds_read_b128 v[{vK1}:{vK1+3}], v{vKA} offset:{koff(tg)+1024}", tag=("K", tg))
    def rdV(tg, m):
        b = vV0 if m == 0 else vV1[tg % 2]
        o = koff(tg) + 1024 * m
        lg.issue(f"ds_read_b64_tr_b16 v[{b}:{b+1}], v{vVA} offset:{o}")
        lg.issue(f"ds_read_b64_tr_b16 v[{b+2}:{b+3}], v{vVA} offset:{o+512}", tag=("V", tg, m))
    rdK(0);
    for i in range(16): p(f"v_mov_b32 v{vO+i}, 0")
    for i in range(4): p(f"v_mov_b32 v{vP+4+i}, 0"); p(f"v_mov_b32 v{vV1[1]+i}, 0")
    lg.wait(("K", 0))
    p(f"v_mfma_f32_32x32x16_bf16 v[{vS[0]}:{vS[0]+15}], v[{vK0}:{vK0+3}], v[{vQ0}:{vQ0+3}], 0")
    p(f"v_mfma_f32_32x32x16_bf16 v[{vS[0]}:{vS[0]+15}], v[{vK1}:{vK1+3}], v[{vQ1}:{vQ1+3}], v[{vS[0]}:{vS[0]+15}]")
    rdK(1); rdV(0, 1); rdV(0, 0)
    p(f"s_mov_b32 s{sIT}, 0")
    p("s_nop 7")
    p.raw(".p2align 6")
    p.label("L_att_loop")
    def period(tg):
        X = vS[tg % 2]; Y = vS[(tg + 1) % 2]
        def ex(i): p(f"v_exp_f32 v{X+i}, v{X+i}")
        def cv(i): p(f"v_cvt_pk_bf16_f32 v{vP+i}, v{X+2*i}, v{X+2*i+1}")
        p("s_waitcnt lgkmcnt(4)")
        p(f"v_mfma_f32_32x32x16_bf16 v[{Y}:{Y+15}], v[{vK0}:{vK0+3}], v[{vQ0}:{vQ0+3}], 0")
        for i in range(0, 4): ex(i)
        cv(0); cv(1)
        p(f"v_mfma_f32_32x32x16_bf16 v[{Y}:{Y+15}], v[{vK1}:{vK1+3}], v[{vQ1}:{vQ1+3}], v[{Y}:{Y+15}]")
        rdK(tg + 2)
        for i in range(4, 8): ex(i)
        cv(2); cv(3)
        b1 = vV1[(tg + 1) % 2]
        p(f"v_mfma_f32_32x32x16_bf16 v[{vO}:{vO+15}], v[{b1}:{b1+3}], v[{vP+4}:{vP+7}], v[{vO}:{vO+15}]")
        rdV(tg + 1, 1)
        for i in range(8, 12): ex(i)
        cv(4); cv(5)
        p("s_waitcnt lgkmcnt(4)")
        p(f"v_mfma_f32_32x32x16_bf16 v[{vO}:{vO+15}], v[{vV0}:{vV0+3}], v[{vP}:{vP+3}], v[{vO}:{vO+15}]")
        rdV(tg + 1, 0)
        for i in range(12, 16): ex(i)
        cv(6); cv(7)
    for st in range(4):
        p("s_waitcnt vmcnt(2)"); p("s_barrier")
        if st == 1:
            p(f"s_cmp_eq_u32 s{sIT}, 3"); p(f"s_cselect_b32 s{sKV+2}, 0, s{sKV+2}")
        dma_step(p, (st + 3) % 4, sSO, sM0)
        p(f"s_add_u32 s{sSO}, s{sSO}, 8192")
        if mid_hook: mid_hook(st)
        period(2*st); period(2*st + 1)
    p(f"s_add_u32 s{sIT}, s{sIT}, 1"); p(f"s_cmp_lt_u32 s{sIT}, 4"); p("s_cbranch_scc1 L_att_loop")
    b1 = vV1[1]
    p("s_waitcnt lgkmcnt(0)")
    p(f"v_mfma_f32_32x32x16_bf16 v[{vO}:{vO+15}], v[{b1}:{b1+3}], v[{vP+4}:{vP+7}], v[{vO}:{vO+15}]")
    p("s_waitcnt vmcnt(0)"); p("s_nop 7")
    p("s_barrier")
    lab_nochk = p.newlabel("L_nochk")
    p(f"s_cmp_lg_u32 s{sRETRY}, 0"); p(f"s_cbranch_scc1 {lab_nochk}")
    p(f"v_mov_b32 v{t}, 0")
    for i in range(16): p(f"v_fma_f32 v{t}, v{vO+i}, 0, v{t}")
    p(f"v_cmp_u_f32 vcc, v{t}, v{t}")
    p(f"v_mov_b32 v{t+1}, {hex(f2u(LIMIT))}")
    p(f"v_cmp_nlt_f32 s[46:47], v{vO+12}, v{t+1}")
    p(f"s_and_b64 s[46:47], s[46:47], s[{sMHI}:{sMHI+1}]"); p("s_or_b64 vcc, vcc, s[46:47]")
    p(f"s_cbranch_vccz {lab_nochk}")
    p(f"v_mov_b32 v{t}, {FLAG_LDS}"); p(f"v_mov_b32 v{t+1}, 1"); p(f"ds_write_b32 v{t}, v{t+1}")
    p.label(lab_nochk)
    p(f"s_lshl_b32 s44, s{sQT}, 12"); p(f"v_lshlrev_b32 v{t}, 4, v{L}"); p(f"v_add_u32 v{t}, s44, v{t}")
    lab = p.newlabel("L_nopub")
    p(f"s_cmp_eq_u32 s{sKH}, 0"); p(f"s_cbranch_scc1 {lab}")
    for i in range(4): p(f"ds_write_b128 v{t}, v[{vO+4*i}:{vO+4*i+3}] offset:{1024*i}")
    p.label(lab)
    p("s_waitcnt lgkmcnt(0)"); p("s_barrier")
    p(f"s_cmp_lg_u32 s{sRETRY}, 0"); p("s_cbranch_scc1 L_att_finish")
    p(f"v_mov_b32 v{t+1}, {FLAG_LDS}"); p(f"ds_read_b32 v{t+1}, v{t+1}"); p("s_waitcnt lgkmcnt(0)")
    p(f"v_readfirstlane_b32 s44, v{t+1}"); p("s_cmp_lg_u32 s44, 0"); p("s_cbranch_scc1 L_att_fallback")
    p.label("L_att_finish")
    p(f"s_cmp_lg_u32 s{sKH}, 0"); p("s_cbranch_scc1 L_att_done")
    Z = vS[0]
    for i in range(4): p(f"ds_read_b128 v[{Z+4*i}:{Z+4*i+3}], v{t} offset:{1024*i}")
    p("s_waitcnt lgkmcnt(0)")
    for i in range(16): p(f"v_add_f32 v{vO+i}, v{vO+i}, v{Z+i}")
    p(f"v_mov_b32 v{t+1}, v{vO+12}"); p(f"v_mov_b32 v{t+2}, v{vO+12}")
    p(f"v_permlane32_swap_b32 v{t+1}, v{t+2}")
    p(f"v_rcp_f32 v{t+2}, v{t+2}")
    for i in range(16): p(f"v_mul_f32 v{vO+i}, v{t+2}, v{vO+i}")
    for i in range(8): p(f"v_cvt_pk_bf16_f32 v{vP+i}, v{vO+2*i}, v{vO+2*i+1}")
    p(f"s_mov_b64 exec, s[{sMHI}:{sMHI+1}]"); p(f"v_mov_b32 v{vP+6}, 0"); p(f"v_mov_b32 v{vP+7}, 0"); p("s_mov_b64 exec, -1")
    p(f"s_lshl_b32 s44, s{sJ}, 2"); p(f"s_add_u32 s44, s44, s{sQT}"); p("s_lshl_b32 s44, s44, 4"); p(f"s_add_u32 s44, s44, s{sHEAD}")
    p("s_lshl_b32 s44, s44, 11"); p(f"s_add_u32 s44, s44, {O_OFF}")
    p(f"buffer_store_dwordx4 v[{vP}:{vP+3}], v{vDV}, s[{sWS}:{sWS+3}], s44 offen {st_mods}")
    p(f"buffer_store_dwordx4 v[{vP+4}:{vP+7}], v{vDV2}, s[{sWS}:{sWS+3}], s44 offen {st_mods}")
    p("s_branch L_att_done")
    p.label("L_att_fallback")
    p("s_barrier")
    p(f"s_mov_b32 s{sRETRY}, 1")
    p(f"s_mov_b64 exec, s[{sMHI}:{sMHI+1}]"); p(f"v_mov_b32 v{vQ1+2}, 0"); p("s_mov_b64 exec, -1")
    vM = t + 4
    p(f"v_mov_b32 v{vM}, 0xff800000")
    p(f"s_mov_b32 s{sSO}, s{sSO0}"); p(f"s_mov_b32 s{sIT}, 0"); p(f"s_mov_b32 s{sKV+2}, s{sWS+2}")
    p.label("L_att_fb_loop")
    dma_step(p, 0, sSO, sM0); p(f"s_add_u32 s{sSO}, s{sSO}, 8192")
    p("s_waitcnt vmcnt(0)"); p("s_barrier")
    for tl in range(2):
        p(f"ds_read_b128 v[{vK0}:{vK0+3}], v{vKA} offset:{tl*4096}"); p(f"ds_read_b128 v[{vK1}:{vK1+3}], v{vKA} offset:{tl*4096+1024}")
        p("s_waitcnt lgkmcnt(0)")
        p(f"v_mfma_f32_32x32x16_bf16 v[{S}:{S+15}], v[{vK0}:{vK0+3}], v[{vQ0}:{vQ0+3}], 0")
        p(f"v_mfma_f32_32x32x16_bf16 v[{S}:{S+15}], v[{vK1}:{vK1+3}], v[{vQ1}:{vQ1+3}], v[{S}:{S+15}]")
        tile_max(p, S, vM, t, init=False)
    p("s_barrier")
    p(f"s_add_u32 s{sIT}, s{sIT}, 1"); p(f"s_cmp_lt_u32 s{sIT}, 16"); p("s_cbranch_scc1 L_att_fb_loop")
    cross_half_max(p, vM, t)
    p(f"s_lshl_b32 s44, s{sW}, 8"); p(f"v_lshlrev_b32 v{t}, 2, v{L}"); p(f"v_add_u32 v{t+1}, s44, v{t}")
    p(f"ds_write_b32 v{t+1}, v{vM}"); p("s_waitcnt lgkmcnt(0)"); p("s_barrier")
    p(f"v_xor_b32 v{t+1}, 1024, v{t+1}"); p(f"ds_read_b32 v{t+2}, v{t+1}"); p("s_waitcnt lgkmcnt(0)")
    p(f"v_max_f32 v{vM}, v{vM}, v{t+2}")
    set_m(p, vM, t)
    p("s_barrier")
    start_dma()
    p("s_branch L_att_main")
    p.label("L_att_done")

def emit_k2(name):
    p = Prog()
    p("s_cmp_ge_u32 s2, 256"); p("s_cbranch_scc1 L_k2_end")
    p("s_load_dwordx2 s[36:37], s[0:1], 80")
    wave_setup(p); ids_attn(p)
    p(f"s_mov_b32 s{sMHI}, 0"); p(f"s_mov_b32 s{sMHI+1}, -1")
    p("s_waitcnt lgkmcnt(0)")
    srd(p, sWS, 36, WS_SIZE)
    emit_attention(p)
    p("s_waitcnt vmcnt(0)")
    p.label("L_k2_end")
    p("s_endpgm")
    return p

if __name__ == "__main__":
    p = emit_k2("k2_kernel")
    txt = p.finalize(verbose=True)
    print("nops:", p.nops_inserted, "lines:", txt.count("\n"))
```

```python
from common import *
from k1 import wave_setup, vLANE, w128_dma_voff

sWS, sW2, sWO, sXR, sOUT, sB2 = 16, 4, 8, 12, 20, 28
sW = 26; sI = 24; sE = 25; sTT = 27; sKQ = 38
vH = 144
vOF = 100
vACC = 16
vWB = 48
vA0 = 2; vA1 = 3; vA0h = 4; vA1h = 5; vD = 6; vLIN = 7
vT = 72
PART_STRIDE = 272
LDS_K3 = 131072

def ids_fin(p):
    p("s_and_b32 s44, s2, 7"); p("s_lshr_b32 s45, s2, 3")
    p(f"s_lshl_b32 s{sI}, s44, 2"); p("s_and_b32 s46, s45, 3"); p(f"s_add_u32 s{sI}, s{sI}, s46")
    p(f"s_lshr_b32 s{sE}, s45, 2")
    p(f"s_and_b32 s{sTT}, s{sW}, 1"); p(f"s_lshr_b32 s{sKQ}, s{sW}, 1")

def tr_addr_fin(p, dst, t0, t1, t2):
    L = vLANE
    p(f"v_lshrrev_b32 v{t0}, 5, v{L}"); p(f"v_lshlrev_b32 v{t0}, 2, v{t0}"); p(f"v_bfe_u32 v{t1}, v{L}, 2, 2"); p(f"v_add_u32 v{t0}, v{t0}, v{t1}")
    p(f"v_lshlrev_b32 v{dst}, 7, v{t0}")
    p(f"v_bfe_u32 v{t0}, v{L}, 4, 1"); p(f"v_lshlrev_b32 v{t0}, 5, v{t0}")
    p(f"v_and_b32 v{t1}, 3, v{L}"); p(f"v_lshlrev_b32 v{t1}, 3, v{t1}"); p(f"v_add_u32 v{t0}, v{t0}, v{t1}")
    p(f"v_bfe_u32 v{t1}, v{L}, 3, 1"); p(f"v_lshlrev_b32 v{t1}, 6, v{t1}"); p(f"v_xor_b32 v{t0}, v{t0}, v{t1}")
    p(f"v_add_u32 v{dst}, v{dst}, v{t0}")

def emit_final(p):
    L = vLANE; t = vT
    p(f"v_lshlrev_b32 v{vLIN}, 4, v{L}")
    w128_dma_voff(p, vD, 896, t, t+1)
    tr_addr_fin(p, vA0, t, t+1, t+2)
    p(f"s_lshl_b32 s44, s{sKQ}, 11"); p(f"v_add_u32 v{vA0}, s44, v{vA0}")
    p(f"v_xor_b32 v{vA1}, 64, v{vA0}"); p(f"v_add_u32 v{vA0h}, 0x10000, v{vA0}"); p(f"v_add_u32 v{vA1h}, 0x10000, v{vA1}")
    sT = 47
    p(f"s_lshl_b32 s{sT}, s{sI}, 1"); p(f"s_add_u32 s{sT}, s{sT}, s{sTT}")
    sSW2 = 48; sSWO = 49; sM0 = 50
    p(f"s_mul_i32 s{sSW2}, s{sKQ}, 448"); p(f"s_lshl_b32 s44, s{sTT}, 3"); p(f"s_add_u32 s{sSW2}, s{sSW2}, s44"); p(f"s_mul_i32 s{sSW2}, s{sSW2}, 896")
    p(f"s_lshl_b32 s45, s{sE}, 7"); p(f"s_add_u32 s{sSW2}, s{sSW2}, s45")
    p(f"s_mul_i32 s{sSWO}, s{sKQ}, 112"); p(f"s_add_u32 s{sSWO}, s{sSWO}, s44"); p(f"s_mul_i32 s{sSWO}, s{sSWO}, 896"); p(f"s_add_u32 s{sSWO}, s{sSWO}, s45")
    p(f"s_lshl_b32 s{sM0}, s{sKQ}, 11"); p(f"s_lshl_b32 s44, s{sTT}, 10"); p(f"s_add_u32 s{sM0}, s{sM0}, s44")
    vm = Cnt(p, "vmcnt", 63)
    def wdma(n):
        p(f"s_add_u32 m0, s{sM0}, {(n % 16) * 8192}")
        if n < 28:
            p(f"s_add_u32 s44, s{sSW2}, {n*16*896}")
            vm.issue(f"buffer_load_dwordx4 v{vD}, s[{sW2}:{sW2+3}], s44 offen lds", tag=("w", n))
        else:
            m = n - 28
            p(f"s_add_u32 s44, s{sSWO}, {(28*(m//2) + 16*(m%2))*896}")
            vm.issue(f"buffer_load_dwordx4 v{vD}, s[{sWO}:{sWO+3}], s44 offen lds", tag=("w", n))
    for n in range(4): wdma(n)
    p(f"s_mul_i32 s45, s{sT}, 56"); p(f"s_mul_i32 s46, s{sKQ}, 14"); p("s_add_u32 s45, s45, s46"); p("s_lshl_b32 s45, s45, 11"); p(f"s_add_u32 s45, s45, {H_OFF}")
    for n in range(28):
        if n % 4 == 0 and n: p("s_add_u32 s45, s45, 4096")
        vm.issue(f"buffer_load_dwordx4 v[{vH+4*n}:{vH+4*n+3}], v{vLIN}, s[{sWS}:{sWS+3}], s45 offen offset:{(n%4)*1024}", tag=("h", n))
        if n == 7:
            for m in range(4, 8): wdma(m)
        if n == 15:
            for m in range(8, 12): wdma(m)
    for n in range(12, 16): wdma(n)
    p(f"s_lshl_b32 s45, s{sT}, 4"); p(f"s_lshl_b32 s46, s{sKQ}, 2"); p("s_add_u32 s45, s45, s46"); p("s_lshl_b32 s45, s45, 11"); p(f"s_add_u32 s45, s45, {O_OFF}")
    for n in range(8):
        if n == 4: p("s_add_u32 s45, s45, 4096")
        vm.issue(f"buffer_load_dwordx4 v[{vOF+4*n}:{vOF+4*n+3}], v{vLIN}, s[{sWS}:{sWS+3}], s45 offen offset:{(n%4)*1024}", tag=("o", n))
    lg = Cnt(p, "lgkmcnt", 15)
    def reads(n):
        b = vWB + 8 * (n % 3); slot = n % 16
        a0, a1 = (vA0, vA1) if slot < 8 else (vA0h, vA1h)
        o = (slot % 8) * 8192
        lg.issue(f"ds_read_b64_tr_b16 v[{b}:{b+1}], v{a0} offset:{o}")
        lg.issue(f"ds_read_b64_tr_b16 v[{b+2}:{b+3}], v{a0} offset:{o+1024}")
        lg.issue(f"ds_read_b64_tr_b16 v[{b+4}:{b+5}], v{a1} offset:{o}")
        lg.issue(f"ds_read_b64_tr_b16 v[{b+6}:{b+7}], v{a1} offset:{o+1024}", tag=("r", n))
    def mf(n):
        b = vWB + 8 * (n % 3)
        x = vH + 4*n if n < 28 else vOF + 4*(n - 28)
        vm.wait(("h", n) if n < 28 else ("o", n - 28))
        lg.wait(("r", n))
        for ct in range(2):
            a = vACC + 16*ct
            c = "0" if n == 0 else f"v[{a}:{a+15}]"
            p(f"v_mfma_f32_32x32x16_bf16 v[{a}:{a+15}], v[{b+4*ct}:{b+4*ct+3}], v[{x}:{x+3}], {c}")
    for g in range(9):
        lg.wait_all()
        vm.wait(("w", 4*g + 3))
        p("s_barrier")
        if g >= 1 and g + 3 <= 8:
            for n in range(4*(g+3), 4*(g+3) + 4): wdma(n)
        reads(4*g)
        if g > 0: mf(4*g - 1)
        reads(4*g + 1)
        mf(4*g)
        reads(4*g + 2); mf(4*g + 1)
        reads(4*g + 3); mf(4*g + 2)
    lg.wait_all(); mf(35)
    vXR = vWB; vB2 = vWB + 4; vOA = vWB + 8
    p(f"v_lshrrev_b32 v{t}, 3, v{L}"); p(f"v_mul_u32_u24 v{vOA}, 896, v{t}")
    p(f"v_and_b32 v{t+1}, 7, v{L}"); p(f"v_lshlrev_b32 v{t+1}, 4, v{t+1}"); p(f"v_add_u32 v{vOA}, v{vOA}, v{t+1}")
    p(f"s_lshl_b32 s44, s{sI}, 3"); p(f"s_add_u32 s44, s44, s{sW}"); p(f"s_mul_i32 s44, s44, {8*896}"); p(f"s_lshl_b32 s45, s{sE}, 7"); p("s_add_u32 s44, s44, s45")
    p(f"buffer_load_dwordx4 v[{vXR}:{vXR+3}], v{vOA}, s[{sXR}:{sXR+3}], s44 offen")
    p(f"buffer_load_dwordx4 v[{vB2}:{vB2+3}], v{t+1}, s[{sB2}:{sB2+3}], s45 offen")
    p("s_barrier")
    p(f"v_and_b32 v{t+2}, 31, v{L}"); p(f"v_mul_u32_u24 v{t+2}, {PART_STRIDE}, v{t+2}")
    p(f"v_lshrrev_b32 v{t+3}, 5, v{L}"); p(f"v_lshlrev_b32 v{t+3}, 4, v{t+3}"); p(f"v_add_u32 v{t+2}, v{t+2}, v{t+3}")
    p(f"s_mul_i32 s46, s{sKQ}, {64*PART_STRIDE}"); p(f"s_mul_i32 s47, s{sTT}, {32*PART_STRIDE}"); p("s_add_u32 s46, s46, s47")
    p(f"v_add_u32 v{t+2}, s46, v{t+2}")
    p("s_nop 3")
    for ct in range(2):
        for aa in range(4):
            r = vACC + 16*ct + 4*aa
            p(f"ds_write_b128 v{t+2}, v[{r}:{r+3}] offset:{(32*ct + 8*aa)*4}")
    p("s_waitcnt lgkmcnt(0)"); p("s_barrier")
    p(f"v_lshrrev_b32 v{t}, 3, v{L}"); p(f"s_lshl_b32 s46, s{sW}, 3"); p(f"v_add_u32 v{t}, s46, v{t}"); p(f"v_mul_u32_u24 v{t}, {PART_STRIDE}, v{t}")
    p(f"v_and_b32 v{t+1}, 7, v{L}"); p(f"v_lshlrev_b32 v{t+1}, 5, v{t+1}"); p(f"v_add_u32 v{t}, v{t}, v{t+1}")
    R = vACC
    for q in range(4):
        p(f"ds_read_b128 v[{R+8*q}:{R+8*q+3}], v{t} offset:{q*64*PART_STRIDE}")
        p(f"ds_read_b128 v[{R+8*q+4}:{R+8*q+7}], v{t} offset:{q*64*PART_STRIDE+16}")
    p("s_waitcnt vmcnt(0)")
    U = vWB + 12
    for i in range(4):
        p(f"v_lshlrev_b32 v{U+2*i}, 16, v{vXR+i}"); p(f"v_and_b32 v{U+2*i+1}, 0xffff0000, v{vXR+i}")
    for i in range(4):
        p(f"v_lshlrev_b32 v{t+2}, 16, v{vB2+i}"); p(f"v_and_b32 v{t+3}, 0xffff0000, v{vB2+i}")
        p(f"v_add_f32 v{U+2*i}, v{U+2*i}, v{t+2}"); p(f"v_add_f32 v{U+2*i+1}, v{U+2*i+1}, v{t+3}")
    p("s_waitcnt lgkmcnt(0)")
    for i in range(8):
        p(f"v_add_f32 v{R+i}, v{R+i}, v{R+8+i}"); p(f"v_add_f32 v{R+16+i}, v{R+16+i}, v{R+24+i}")
    for i in range(8):
        p(f"v_add_f32 v{R+i}, v{R+i}, v{R+16+i}");
    for i in range(8):
        p(f"v_add_f32 v{R+i}, v{R+i}, v{U+i}")
    for i in range(4): p(f"v_cvt_pk_bf16_f32 v{R+8+i}, v{R+2*i}, v{R+2*i+1}")
    p(f"buffer_store_dwordx4 v[{R+8}:{R+11}], v{vOA}, s[{sOUT}:{sOUT+3}], s44 offen")

def emit_k3(name):
    p = Prog()
    p("s_cmp_ge_u32 s2, 224"); p("s_cbranch_scc1 L_k3_end")
    p("s_load_dwordx2 s[30:31], s[0:1], 0"); p("s_load_dwordx2 s[32:33], s[0:1], 16")
    p("s_load_dwordx4 s[52:55], s[0:1], 48"); p("s_load_dwordx2 s[34:35], s[0:1], 64"); p("s_load_dwordx2 s[36:37], s[0:1], 80")
    wave_setup(p); ids_fin(p)
    p("s_waitcnt lgkmcnt(0)")
    srd(p, sXR, 30, X_BYTES); srd(p, sWO, 32, WO_BYTES); srd(p, sW2, 52, W2_BYTES); srd(p, sOUT, 34, X_BYTES); srd(p, sWS, 36, WS_SIZE)
    srd(p, sB2, 54, 896)
    emit_final(p)
    p("s_waitcnt vmcnt(0)")
    p.label("L_k3_end")
    p("s_endpgm")
    return p

if __name__ == "__main__":
    p = emit_k3("k3_kernel")
    txt = p.finalize(verbose=True)
    print("nops:", p.nops_inserted, "lines:", txt.count("\n"))
```

```python
import sys
from common import *
import k1, k2, k3
def build(out, extra_empty=0):
    p1 = k1.emit_k1("k1_kernel"); p2 = k2.emit_k2("k2_kernel"); p3 = k3.emit_k3("k3_kernel")
    L = ["; @launch kernel=k1_kernel grid=(256,1,1) block=(512,1,1) lds=163840",
         f"; @launch kernel=k2_kernel grid=(256,1,1) block=(512,1,1) lds={k2.LDS_K2}",
         f"; @launch kernel=k3_kernel grid=(224,1,1) block=(512,1,1) lds={k3.LDS_K3}"]
    L += ["; @launch kernel=k0_kernel grid=(256,1,1) block=(512,1,1) lds=0"] * extra_empty
    txt = header(L)
    txt += kernel_text("k1_kernel", p1.finalize()) + kernel_text("k2_kernel", p2.finalize()) + kernel_text("k3_kernel", p3.finalize())
    if extra_empty: txt += kernel_text("k0_kernel", "  s_endpgm\n")
    txt += '.section .rodata,"a"\n.p2align 6\n' + kd("k1_kernel") + '.p2align 6\n' + kd("k2_kernel") + '.p2align 6\n' + kd("k3_kernel")
    if extra_empty: txt += '.p2align 6\n' + kd("k0_kernel", vgpr=8)
    open(out, "w").write(txt)
build(sys.argv[1], int(sys.argv[2]) if len(sys.argv) > 2 else 0)
```

```python
from asm import *
NAME = 'parallel_sum__softmax_full_mha__dense_activation_squared_relu__prompt'
Q_OFF  = 0x000000
KV_OFF = 0x200000
H_OFF  = 0x600000
O_OFF  = 0xE00000
FLAG_OFF = 0x1000000
WS_SIZE = 0x10000000
X_BYTES = 2048*448*2
WQKV_BYTES = 448*1344*2
WO_BYTES = 448*448*2
W1_BYTES = 448*1792*2
W2_BYTES = 1792*448*2
QSCALE = (28 ** -0.5) * 1.4426950408889634

import struct
def f2u(f): return struct.unpack('<I', struct.pack('<f', f))[0]

def srd(p, d, base, size):
    p(f"s_mov_b32 s{d}, s{base}")
    p(f"s_and_b32 s{d+1}, s{base+1}, 0xffff")
    p(f"s_mov_b32 s{d+2}, {hex(size)}")
    p(f"s_mov_b32 s{d+3}, 0x00020000")

def header(launches):
    s = open('cdna_kernels/' + NAME + '.s.ref').read().split('\n')
    out = []
    for l in s:
        if l.startswith('; @launch') or l.startswith('; Override') or l.startswith('; grid='): continue
        if not l.startswith(';'): break
        out.append(l)
    out += launches
    return '\n'.join(out) + '\n.amdgcn_target "amdgcn-amd-amdhsa--gfx950"\n.text\n'

def kernel_text(name, body):
    return f".globl {name}\n.p2align 8\n.type {name},@function\n{name}:\n{body}"

def kd(name, vgpr=256, sgpr=102, accum=None):
    accum = accum or ((vgpr + 3) // 4 * 4)
    return f""".amdhsa_kernel {name}
  .amdhsa_next_free_vgpr {vgpr}
  .amdhsa_next_free_sgpr {sgpr}
  .amdhsa_accum_offset {accum}
  .amdhsa_group_segment_fixed_size 0
  .amdhsa_kernarg_size 88
  .amdhsa_user_sgpr_count 2
  .amdhsa_user_sgpr_kernarg_segment_ptr 1
  .amdhsa_system_sgpr_workgroup_id_x 1
  .amdhsa_float_denorm_mode_32 3
.end_amdhsa_kernel
"""

def dma(p, voff, srd_, soff, m0expr_sreg, m0_add=0, mods=""):
    if m0_add: p(f"s_add_u32 m0, s{m0expr_sreg}, {m0_add}")
    else: p(f"s_mov_b32 m0, s{m0expr_sreg}")
    p("s_nop 0")
    p(f"buffer_load_dwordx4 v{voff}, s[{srd_}:{srd_+3}], {soff} offen lds{(' ' + mods) if mods else ''}")


STAMP_OFF = 0x2000000
STAMPS = False
class Stamper:
    def __init__(self, p, base=64): self.p = p; self.n = 0; self.base = base
    def __call__(self, name=""):
        if not STAMPS_ON(): return
        p = self.p
        assert self.n < 16
        p(f"s_memtime s[{self.base+2*self.n}:{self.base+2*self.n+1}]"); p("s_waitcnt lgkmcnt(0)")
        self.n += 1
    def real(self):
        if not STAMPS_ON(): return
        p = self.p
        p(f"s_memrealtime s[{self.base+2*self.n}:{self.base+2*self.n+1}]"); p("s_waitcnt lgkmcnt(0)")
        self.n += 1
    def flush(self, sWS, sWave, kidx, vt=250):
        if not STAMPS_ON(): return
        p = self.p
        p(f"s_lshl_b32 s98, s2, 3"); p(f"s_add_u32 s98, s98, s{sWave}"); p("s_lshl_b32 s98, s98, 6"); p(f"s_add_u32 s98, s98, {STAMP_OFF + kidx*0x40000}")
        p(f"v_mov_b32 v{vt+1}, 0")
        for i in range(self.n):
            p(f"v_mov_b32 v{vt}, s{self.base+2*i}")
            p(f"buffer_store_dword v{vt}, v{vt+1}, s[{sWS}:{sWS+3}], s98 offen offset:{4*i}")
            p("s_nop 0")
import common as _c
def STAMPS_ON(): return _c.STAMPS
```

```python
from common import *

XA = 0; RING = 114688; TAB = 151552
TAB_CSQ = TAB; TAB_CSF = TAB + 512; TAB_B1 = TAB + 1024
LDS_K1 = 163840

sX, sWQ, sW1, sWS, sB1 = 4, 8, 12, 16, 20
sJ, sC, sW, sHW = 24, 25, 26, 27
sONES = 40; sMHI = 42
vLANE = 1
vXA = 2
vWA = 6
vW1A, vW1B = 7, 8
vXD = 9
vSUM = 13; vSUM2 = 14; vSQ = 15; vSQ2 = 232
vR = 9; vNMU = 10; vTABA = 11; vLIN = 12
vX = 16
vACC = 128
vWF = 208
vT = 233

def wave_setup(p):
    p(f"v_and_b32 v{vLANE}, 63, v0")
    p(f"v_lshrrev_b32 v2, 6, v0")
    p("s_nop 0")
    p(f"v_readfirstlane_b32 s{sW}, v2")

def emit_ids(p):
    p("s_and_b32 s38, s2, 7"); p("s_lshr_b32 s39, s2, 3")
    p("s_lshr_b32 s41, s38, 1"); p("s_lshl_b32 s41, s41, 2"); p("s_and_b32 s44, s39, 3"); p(f"s_add_u32 s{sJ}, s41, s44")
    p("s_and_b32 s41, s38, 1"); p("s_lshl_b32 s41, s41, 3"); p("s_lshr_b32 s44, s39, 2"); p(f"s_add_u32 s{sC}, s41, s44")

def bf16_round(p, dst, src, tmp):
    p(f"v_cvt_pk_bf16_f32 v{tmp}, v{src}, v{src}")
    p(f"v_lshlrev_b32 v{dst}, 16, v{tmp}")

def tr_lane_terms(p, vrow, vcolb, t0):
    L = vLANE
    p(f"v_lshrrev_b32 v{t0}, 5, v{L}"); p(f"v_lshlrev_b32 v{t0}, 3, v{t0}")
    p(f"v_bfe_u32 v{vrow}, v{L}, 2, 2"); p(f"v_add_u32 v{vrow}, v{vrow}, v{t0}")
    p(f"v_bfe_u32 v{t0}, v{L}, 4, 1"); p(f"v_lshlrev_b32 v{t0}, 5, v{t0}")
    p(f"v_and_b32 v{vcolb}, 3, v{L}"); p(f"v_lshlrev_b32 v{vcolb}, 3, v{vcolb}"); p(f"v_add_u32 v{vcolb}, v{vcolb}, v{t0}")

def w128_tr_addr(p, dst, t0, t1, t2):
    L = vLANE
    tr_lane_terms(p, t0, t1, t2)
    p(f"v_bfe_u32 v{t2}, v{L}, 3, 1"); p(f"v_lshlrev_b32 v{t2}, 6, v{t2}")
    p(f"v_xor_b32 v{t1}, v{t1}, v{t2}")
    p(f"v_lshlrev_b32 v{dst}, 7, v{t0}"); p(f"v_add_u32 v{dst}, v{dst}, v{t1}")

def w128_dma_voff(p, dst, stride, t0, t1):
    L = vLANE
    p(f"v_lshrrev_b32 v{t0}, 3, v{L}"); p(f"v_mul_u32_u24 v{dst}, {stride}, v{t0}")
    p(f"v_bfe_u32 v{t0}, v{L}, 4, 1"); p(f"v_lshlrev_b32 v{t0}, 2, v{t0}")
    p(f"v_and_b32 v{t1}, 7, v{L}"); p(f"v_xor_b32 v{t1}, v{t1}, v{t0}"); p(f"v_lshlrev_b32 v{t1}, 4, v{t1}")
    p(f"v_add_u32 v{dst}, v{dst}, v{t1}")

def half_sum(p, reg, t1, t2):
    p(f"v_mov_b32 v{t1}, v{reg}"); p(f"v_mov_b32 v{t2}, v{reg}")
    p(f"v_permlane32_swap_b32 v{t1}, v{t2}")
    p(f"v_add_f32 v{reg}, v{t1}, v{t2}")

def emit_compute(p, st_mods="", stamp=lambda n="": None):
    L = vLANE
    for rg in range(4):
        p(f"v_lshrrev_b32 v{vT}, 4, v{L}");
        if rg & 1: p(f"v_add_u32 v{vT}, 4, v{vT}")
        p(f"v_and_b32 v{vT+1}, 7, v{L}"); p(f"v_xor_b32 v{vT}, v{vT}, v{vT+1}"); p(f"v_lshlrev_b32 v{vT}, 4, v{vT}")
        p(f"v_lshrrev_b32 v{vT+1}, 3, v{L}"); p(f"v_mul_u32_u24 v{vT+1}, 896, v{vT+1}")
        if rg: p(f"v_add_u32 v{vT}, {rg*7168}, v{vT}")
        p(f"v_add_u32 v{vXD+rg}, v{vT}, v{vT+1}")
    p(f"s_lshl_b32 s44, s{sJ}, 2"); p(f"s_add_u32 s44, s44, s{sW}"); p(f"s_mul_i32 s44, s44, {32*896}")
    p(f"s_lshl_b32 s46, s{sW}, 12"); p(f"s_mov_b32 m0, s46")
    p("s_mov_b32 s45, 7")
    p.label("L_xdma")
    for rg in range(4):
        p(f"buffer_load_dwordx4 v{vXD+rg}, s[{sX}:{sX+3}], s44 offen lds")
        p(f"s_add_u32 m0, m0, {1024 if rg < 3 else 16384-3072}")
        if rg < 3: p("s_nop 0")
    p("s_add_u32 s44, s44, 128"); p("s_sub_u32 s45, s45, 1"); p("s_cmp_lg_u32 s45, 0"); p("s_cbranch_scc1 L_xdma")
    p(f"v_and_b32 v{vT}, 31, v{L}"); p(f"v_lshlrev_b32 v{vT+1}, 7, v{vT}"); p(f"v_add_u32 v{vT+1}, s46, v{vT+1}")
    p(f"v_bfe_u32 v{vT}, v{L}, 1, 3"); p(f"v_lshrrev_b32 v{vT+2}, 5, v{L}"); p(f"v_xor_b32 v{vT}, v{vT}, v{vT+2}")
    for q in range(4):
        p(f"v_xor_b32 v{vT+2}, {2*q}, v{vT}"); p(f"v_lshlrev_b32 v{vT+2}, 4, v{vT+2}"); p(f"v_add_u32 v{vXA+q}, v{vT+1}, v{vT+2}")
    tr_lane_terms(p, vT, vT+1, vT+2)
    p(f"v_mul_u32_u24 v{vT}, 192, v{vT}"); p(f"v_add_u32 v{vT}, v{vT}, v{vT+1}")
    p(f"s_and_b32 s44, s{sC}, 1"); p("s_lshl_b32 s44, s44, 3"); p(f"s_add_u32 s44, s44, {RING}")
    p(f"v_add_u32 v{vWA}, s44, v{vT}")
    w128_tr_addr(p, vW1A, vT, vT+1, vT+2); p(f"v_xor_b32 v{vW1B}, 64, v{vW1A}")
    for r in (vSUM, vSUM2, vSQ, vSQ2): p(f"v_mov_b32 v{r}, 0")
    lg = Cnt(p, "lgkmcnt", 15)
    def reads(kk):
        kc, q = kk // 4, kk % 4
        off = kc * 16384
        if kk == 16:
            for qq in range(4): p(f"v_add_u32 v{vXA+qq}, 0x10000, v{vXA+qq}")
        if kc >= 4: off -= 65536
        lg.issue(f"ds_read_b128 v[{vX+4*kk}:{vX+4*kk+3}], v{vXA+q} offset:{off}")
        slot = (kc % 3) * 4 + q
        b = vWF + 12 * (kk & 1)
        for t in range(3):
            o = slot * 3072 + 56 * t
            lg.issue(f"ds_read_b64_tr_b16 v[{b+4*t}:{b+4*t+1}], v{vWA} offset:{o}")
            lg.issue(f"ds_read_b64_tr_b16 v[{b+4*t+2}:{b+4*t+3}], v{vWA} offset:{o+768}", tag=("k", kk))
    def mfmas(kk):
        b = vWF + 12 * (kk & 1); x = vX + 4 * kk
        st = [f"v_dot2c_f32_bf16 v{vSUM if i % 2 == 0 else vSUM2}, s{sONES}, v{x+i}" for i in range(4)] + \
             [f"v_dot2c_f32_bf16 v{vSQ if i % 2 == 0 else vSQ2}, v{x+i}, v{x+i}" for i in range(4)]
        st = [st[0], st[4], st[1], st[5], st[2], st[6], st[3], st[7]]
        for t in range(3):
            a = vACC + 16 * t
            c = "0" if kk == 0 else f"v[{a}:{a+15}]"
            p(f"v_mfma_f32_32x32x16_bf16 v[{a}:{a+15}], v[{b+4*t}:{b+4*t+3}], v[{x}:{x+3}], {c}")
            for s_ in st[3*t:3*t+3]: p(s_)
    for g in range(7):
        lg.wait_all()
        p(f"s_waitcnt vmcnt({24-4*g})")
        p("s_barrier")
        if g in (0, 1, 4): stamp(f"bar{g}")
        reads(4*g)
        if g > 0: mfmas(4*g - 1)
        for q in range(1, 4):
            reads(4*g + q)
            lg.wait(("k", 4*g + q - 1))
            mfmas(4*g + q - 1)
    lg.wait_all()
    mfmas(27)
    t = vT
    p("s_nop 1")
    p(f"v_add_f32 v{vSUM}, v{vSUM}, v{vSUM2}"); p(f"v_add_f32 v{vSQ}, v{vSQ}, v{vSQ2}")
    half_sum(p, vSUM, t, t+1); half_sum(p, vSQ, t, t+1)
    p(f"v_mul_f32 v{vSUM}, {hex(f2u(1/448))}, v{vSUM}"); p(f"v_mul_f32 v{vSQ}, {hex(f2u(1/448))}, v{vSQ}")
    p(f"v_fma_f32 v{vSQ}, -v{vSUM}, v{vSUM}, v{vSQ}"); p(f"v_max_f32 v{vSQ}, 0, v{vSQ}")
    bf16_round(p, vSUM, vSUM, t); bf16_round(p, vSQ, vSQ, t)
    p(f"v_add_f32 v{vSQ}, {hex(f2u(1e-5))}, v{vSQ}"); bf16_round(p, vSQ, vSQ, t)
    p(f"v_sqrt_f32 v{vSQ}, v{vSQ}"); bf16_round(p, vSQ, vSQ, t)
    p(f"v_rcp_f32 v{vR}, v{vSQ}"); p(f"v_sub_f32 v{vNMU}, 0, v{vSUM}")
    p(f"v_lshrrev_b32 v{t}, 5, v{L}"); p(f"v_lshlrev_b32 v{t}, 4, v{t}"); p(f"v_add_u32 v{vTABA}, {TAB}, v{t}")
    p(f"v_lshlrev_b32 v{vLIN}, 4, v{L}")
    vVO = vSUM2
    p(f"v_and_b32 v{vVO}, 31, v{L}"); p(f"v_lshlrev_b32 v{vVO}, 6, v{vVO}"); p(f"v_add_u32 v{vVO}, v{vVO}, v{t}"); p(f"v_add_u32 v{vVO}, 2048, v{vVO}")
    stamp("qkvdone")
    p("s_barrier")
    lg.reset()
    CS = vWF
    P = vWF + 16
    p(f"s_lshl_b32 s47, s{sJ}, 2"); p(f"s_add_u32 s47, s47, s{sW}")
    for tt in range(3):
        a = vACC + 16 * tt
        for aa in range(4):
            lg.issue(f"ds_read_b128 v[{CS+4*aa}:{CS+4*aa+3}], v{vTABA} offset:{(32*tt + 8*aa)*4}", tag=("cs", tt, aa))
        p(f"s_mul_i32 s48, s{sC}, 3"); p(f"s_add_u32 s48, s48, {tt}")
        p("s_lshr_b32 s49, s48, 4"); p("s_and_b32 s48, s48, 15")
        p("s_lshl_b32 s48, s48, 6"); p("s_add_u32 s48, s48, s47")
        p("s_lshl_b32 s50, s48, 11"); p("s_lshl_b32 s51, s48, 12"); p(f"s_add_u32 s51, s51, {KV_OFF}")
        p("s_cmp_eq_u32 s49, 0")
        p("s_cselect_b32 s50, s50, s51")
        p(f"s_cselect_b32 s52, {hex(f2u(QSCALE))}, 1.0")
        p("s_cmp_eq_u32 s49, 2")
        p("s_cselect_b64 vcc, -1, 0")
        p(f"s_cselect_b32 s53, 32, 1024")
        p(f"v_mul_f32 v{t}, s52, v{vR}")
        p(f"v_cndmask_b32 v{t+1}, v{vLIN}, v{vVO}, vcc")
        p(f"v_add_u32 v{t+2}, s53, v{t+1}")
        for aa in range(4):
            lg.wait(("cs", tt, aa))
            for b in range(4): p(f"v_fmac_f32 v{a+4*aa+b}, v{vNMU}, v{CS+4*aa+b}")
            for b in range(4): p(f"v_mul_f32 v{a+4*aa+b}, v{t}, v{a+4*aa+b}")
            for pp in range(2): p(f"v_cvt_pk_bf16_f32 v{P+2*aa+pp}, v{a+4*aa+2*pp}, v{a+4*aa+2*pp+1}")
        p(f"s_mov_b64 exec, s[{sMHI}:{sMHI+1}]")
        p(f"v_mov_b32 v{P+6}, 0x3f803f80"); p(f"v_mov_b32 v{P+7}, 0")
        p("s_mov_b64 exec, -1")
        p(f"buffer_store_dwordx4 v[{P}:{P+3}], v{t+1}, s[{sWS}:{sWS+3}], s50 offen {st_mods}")
        p(f"buffer_store_dwordx4 v[{P+4}:{P+7}], v{t+2}, s[{sWS}:{sWS+3}], s50 offen {st_mods}")
        p("s_nop 1")
    stamp("qkvepi")
    p(f"s_cmp_ge_u32 s{sC}, 14"); p("s_cbranch_scc1 L_k1_done")
    accA, accB = 176, 192
    WB = 208
    NB = 5
    E = 128
    p("s_mov_b32 s54, 0")
    p(f"s_mul_i32 s55, s47, 56"); p(f"s_lshl_b32 s56, s{sC}, 2"); p("s_add_u32 s55, s55, s56"); p("s_lshl_b32 s55, s55, 11")
    p(f"s_add_u32 s55, s55, {H_OFF - 2048}")
    p(f"v_add_u32 v{vTABA}, {TAB_CSF - TAB - 128}, v{vTABA}")
    def epi_stream(acc, lgc):
        ops = []
        def rd(aa):
            bb = aa & 1
            ops.append(lambda: lgc.issue(f"ds_read_b128 v[{E+4*bb}:{E+4*bb+3}], v{vTABA} offset:{32*aa}"))
            ops.append(lambda: lgc.issue(f"ds_read_b128 v[{E+8+4*bb}:{E+8+4*bb+3}], v{vTABA} offset:{512+32*aa}", tag=("e", aa)))
        rd(0); rd(1)
        for aa in range(4):
            bb = aa & 1; cs = E + 4*bb; b1 = E + 8 + 4*bb
            ops.append(lambda aa=aa: lgc.wait(("e", aa)))
            for b in range(4): ops.append(lambda x=f"v_fmac_f32 v{acc+4*aa+b}, v{vNMU}, v{cs+b}": p(x))
            for b in range(4): ops.append(lambda x=f"v_fmac_f32 v{b1+b}, v{acc+4*aa+b}, v{vR}": p(x))
            for b in range(4): ops.append(lambda x=f"v_max_f32 v{b1+b}, 0, v{b1+b}": p(x))
            for b in range(4): ops.append(lambda x=f"v_mul_f32 v{b1+b}, v{b1+b}, v{b1+b}": p(x))
            for pp in range(2): ops.append(lambda x=f"v_cvt_pk_bf16_f32 v{E+16+2*aa+pp}, v{b1+2*pp}, v{b1+2*pp+1}": p(x))
            if aa + 2 < 4: rd(aa + 2)
        return ops
    def epi_store(skip_label=None):
        p(f"buffer_store_dwordx4 v[{E+16}:{E+19}], v{vLIN}, s[{sWS}:{sWS+3}], s55 offen {st_mods}")
        p(f"buffer_store_dwordx4 v[{E+20}:{E+23}], v{vLIN}, s[{sWS}:{sWS+3}], s55 offen offset:1024 {st_mods}")
    def tile_pass(acc, vaddr, other, cond_first):
        lgc = Cnt(p, "lgkmcnt", 15)
        p("s_barrier")
        def rd(kk):
            b = WB + 4 * (kk % NB)
            lgc.issue(f"ds_read_b64_tr_b16 v[{b}:{b+1}], v{vaddr} offset:{kk*2048}")
            lgc.issue(f"ds_read_b64_tr_b16 v[{b+2}:{b+3}], v{vaddr} offset:{kk*2048+512}", tag=("w", kk))
        for kk in range(NB - 1): rd(kk)
        ops = epi_stream(other, lgc)
        for kk in range(28):
            if kk + NB - 1 < 28: rd(kk + NB - 1)
            lgc.wait(("w", kk))
            b = WB + 4 * (kk % NB); x = vX + 4 * kk
            c = "0" if kk == 0 else f"v[{acc}:{acc+15}]"
            p(f"v_mfma_f32_32x32x16_bf16 v[{acc}:{acc+15}], v[{b}:{b+3}], v[{x}:{x+3}], {c}")
            if kk >= 1:
                n = 0
                while ops and n < 4:
                    ops.pop(0)(); n += 1
        while ops: ops.pop(0)()
        lgc.wait_all()
        if cond_first:
            lab = p.newlabel("L_skipst")
            p("s_cmp_eq_u32 s54, 0"); p(f"s_cbranch_scc1 {lab}")
            epi_store(); p.label(lab)
        else:
            epi_store()
        p("s_add_u32 s55, s55, 2048"); p(f"v_add_u32 v{vTABA}, 128, v{vTABA}")
    p.label("L_ffn1")
    tile_pass(accA, vW1A, accB, True)
    tile_pass(accB, vW1B, accA, False)
    p(f"v_add_u32 v{vW1A}, 57344, v{vW1A}"); p(f"v_add_u32 v{vW1B}, 57344, v{vW1B}")
    p("s_add_u32 s54, s54, 1"); p("s_cmp_lt_u32 s54, 2"); p("s_cbranch_scc1 L_ffn1")
    stamp("ffnloop")
    lgc = Cnt(p, "lgkmcnt", 15)
    p("s_nop 7")
    for op in epi_stream(accB, lgc): op()
    epi_store()
    p("s_branch L_k1_done")

def emit_helper(p):
    L = vLANE
    p(f"s_sub_u32 s{sHW}, s{sW}, 4")
    vD = 2
    vD1 = 5; vA = 6; vCS = 7; vF = 8
    t = 20
    for i in range(3):
        p(f"v_lshlrev_b32 v{t}, 4, v{L}");
        if i: p(f"v_add_u32 v{t}, {i*1024}, v{t}")
        p(f"v_lshrrev_b32 v{t+1}, 6, v{t}"); p(f"v_mul_u32_u24 v{t+1}, 43, v{t+1}"); p(f"v_lshrrev_b32 v{t+1}, 7, v{t+1}")
        p(f"v_mul_u32_u24 v{t+2}, 192, v{t+1}"); p(f"v_sub_u32 v{t+2}, v{t}, v{t+2}")
        p(f"v_mul_u32_u24 v{t+1}, 2688, v{t+1}"); p(f"v_add_u32 v{vD+i}, v{t+1}, v{t+2}")
    p(f"s_mul_i32 s44, s{sHW}, {16*2688}"); p(f"s_mul_i32 s45, s{sC}, 168"); p("s_add_u32 s44, s44, s45")
    p(f"s_and_b32 s45, s{sC}, 1"); p("s_lshl_b32 s45, s45, 3"); p("s_sub_u32 s44, s44, s45")
    p(f"s_mul_i32 s46, s{sHW}, 3072"); p(f"s_add_u32 s46, s46, {RING}")
    vm = Cnt(p, "vmcnt", 63)
    def wq_group(g):
        for i in range(3):
            p(f"s_add_u32 m0, s46, {(g % 3)*4*3072 + i*1024}")
            p(f"s_add_u32 s47, s44, {g*4*16*2688}")
            vm.issue(f"buffer_load_dwordx4 v{vD+i}, s[{sWQ}:{sWQ+3}], s47 offen lds", tag=("g", g))
    for g in range(3): wq_group(g)
    p(f"s_lshl_b32 s48, s{sC}, 8"); p(f"v_lshlrev_b32 v{t}, 2, v{L}")
    w128_dma_voff(p, vD1, 3584, t+1, t+2)
    tr_lane_terms(p, t+1, t+2, t+3)
    p(f"v_mul_u32_u24 v{t+1}, 192, v{t+1}"); p(f"v_add_u32 v{t+1}, v{t+1}, v{t+2}")
    p(f"s_and_b32 s45, s{sC}, 1"); p("s_lshl_b32 s45, s45, 3"); p(f"s_mul_i32 s49, s{sHW}, 56"); p("s_add_u32 s45, s45, s49"); p(f"s_add_u32 s45, s45, {RING}")
    p(f"v_add_u32 v{vA}, s45, v{t+1}")
    p(f"v_mov_b32 v{vCS}, 0")
    p(f"s_mul_i32 s50, s{sHW}, {8*3584}"); p(f"s_lshl_b32 s51, s{sC}, 8"); p("s_add_u32 s50, s50, s51")
    p(f"s_lshl_b32 s51, s{sHW}, 10")
    def w1_half(half):
        lab = p.newlabel("L_w1dma")
        p(f"s_add_u32 s52, s50, {128*half}"); p(f"s_add_u32 s53, s51, {57344*half}"); p("s_mov_b32 s54, 14")
        p.label(lab)
        p("s_mov_b32 m0, s53"); p("s_add_u32 s53, s53, 4096")
        p(f"buffer_load_dwordx4 v{vD1}, s[{sW1}:{sW1+3}], s52 offen lds")
        p(f"s_add_u32 s52, s52, {32*3584}"); p("s_sub_u32 s54, s54, 1"); p("s_cmp_lg_u32 s54, 0"); p(f"s_cbranch_scc1 {lab}")
        vm.n += 14; vm.tags[("w1", half)] = vm.n
    lg = Cnt(p, "lgkmcnt", 15)
    for g in range(7):
        vm.wait(("g", g))
        p("s_barrier")
        if g >= 1 and g + 2 <= 6: wq_group(g + 2)
        if g == 4: w1_half(0)
        for q in range(4):
            o = ((g % 3) * 4 + q) * 3072
            lg.issue(f"ds_read_b64_tr_b16 v[{vF+4*(q&1)}:{vF+4*(q&1)+1}], v{vA} offset:{o}")
            lg.issue(f"ds_read_b64_tr_b16 v[{vF+4*(q&1)+2}:{vF+4*(q&1)+3}], v{vA} offset:{o+768}", tag=("c", g, q))
            if q >= 1:
                lg.wait(("c", g, q-1))
                for i in range(4): p(f"v_dot2c_f32_bf16 v{vCS}, s{sONES}, v{vF+4*((q-1)&1)+i}")
        lg.wait_all()
        for i in range(4): p(f"v_dot2c_f32_bf16 v{vCS}, s{sONES}, v{vF+4+i}")
    return vm, lg, vD1, vA, vCS, vF, t, w1_half

def emit_helper2(p, ctx):
    vm, lg, vD1, vA, vCS, vF, t, w1_half = ctx
    L = vLANE
    def cs_write(tab_off_sreg):
        p("s_nop 2")
        half_sum(p, vCS, t, t+1)
        p(f"v_and_b32 v{t}, 31, v{L}"); p(f"v_lshlrev_b32 v{t}, 2, v{t}"); p(f"v_add_u32 v{t}, s{tab_off_sreg}, v{t}")
        p(f"ds_write_b32 v{t}, v{vCS}")
        p("s_waitcnt lgkmcnt(0)")
    p(f"s_lshl_b32 s55, s{sHW}, 7"); p(f"s_add_u32 s55, s55, {TAB_CSQ}")
    cs_write(55)
    p("s_barrier")
    p(f"s_cmp_ge_u32 s{sC}, 14"); p("s_cbranch_scc1 L_k1_done")
    p(f"v_lshlrev_b32 v{t}, 2, v{L}")
    p(f"buffer_load_dword v{t+1}, v{t}, s[{sB1}:{sB1+3}], s48 offen")
    w1_half(1)
    p("s_waitcnt vmcnt(14)")
    p(f"v_lshlrev_b32 v{t+2}, 16, v{t+1}"); p(f"v_and_b32 v{t+3}, 0xffff0000, v{t+1}")
    p(f"v_lshlrev_b32 v{t}, 3, v{L}"); p(f"v_add_u32 v{t}, {TAB_B1}, v{t}")
    p(f"ds_write_b64 v{t}, v[{t+2}:{t+3}]")
    p("s_waitcnt lgkmcnt(0)")
    w128_tr_addr(p, vA, t, t+1, t+2)
    p(f"s_and_b32 s56, s{sHW}, 1"); p("s_lshl_b32 s56, s56, 6"); p(f"v_xor_b32 v{vA}, s56, v{vA}")
    p(f"s_lshr_b32 s56, s{sHW}, 1"); p("s_mul_i32 s57, s56, 57344"); p(f"v_add_u32 v{vA}, s57, v{vA}")
    p(f"s_lshl_b32 s55, s{sHW}, 7"); p(f"s_add_u32 s55, s55, {TAB_CSF}")
    def cs_loop():
        lab = p.newlabel("L_cs")
        p(f"v_mov_b32 v{vCS}, 0"); p("s_mov_b32 s58, 28"); p(f"v_mov_b32 v{t+4}, v{vA}")
        p.label(lab)
        p(f"ds_read_b64_tr_b16 v[{vF}:{vF+1}], v{t+4}"); p(f"ds_read_b64_tr_b16 v[{vF+2}:{vF+3}], v{t+4} offset:512")
        p(f"v_add_u32 v{t+4}, 2048, v{t+4}")
        p("s_waitcnt lgkmcnt(0)")
        for i in range(4): p(f"v_dot2c_f32_bf16 v{vCS}, s{sONES}, v{vF+i}")
        p("s_sub_u32 s58, s58, 1"); p("s_cmp_lg_u32 s58, 0"); p(f"s_cbranch_scc1 {lab}")
        cs_write(55)
    p("s_barrier")
    l1 = p.newlabel("L_h"); p("s_cmp_lg_u32 s56, 0"); p(f"s_cbranch_scc1 {l1}"); cs_loop(); p.label(l1)
    p("s_barrier")
    p("s_waitcnt vmcnt(0)")
    p("s_barrier")
    l2 = p.newlabel("L_h"); p("s_cmp_eq_u32 s56, 0"); p(f"s_cbranch_scc1 {l2}"); cs_loop(); p.label(l2)
    p("s_barrier")

def emit_k1(name):
    p = Prog()
    p("s_cmp_ge_u32 s2, 256"); p("s_cbranch_scc1 L_k1_end")
    p("s_load_dwordx4 s[28:31], s[0:1], 0"); p("s_load_dwordx4 s[32:35], s[0:1], 32"); p("s_load_dwordx2 s[36:37], s[0:1], 80")
    wave_setup(p); emit_ids(p)
    p(f"s_mov_b32 s{sONES}, 0x3f803f80"); p(f"s_mov_b32 s{sMHI}, 0"); p(f"s_mov_b32 s{sMHI+1}, -1")
    p("s_waitcnt lgkmcnt(0)")
    srd(p, sX, 28, X_BYTES); srd(p, sWQ, 30, WQKV_BYTES); srd(p, sW1, 32, W1_BYTES); srd(p, sB1, 34, 3584); srd(p, sWS, 36, WS_SIZE)
    st = Stamper(p); st.real(); st("start")
    p(f"s_cmp_ge_u32 s{sW}, 4"); p("s_cbranch_scc1 L_k1_helper")
    emit_compute(p, stamp=st)
    p.label("L_k1_helper")
    ctx = emit_helper(p)
    emit_helper2(p, ctx)
    p.label("L_k1_done")
    p("s_waitcnt vmcnt(0)")
    st("end"); st.real(); st.flush(sWS, sW, 0); p("s_waitcnt vmcnt(0)")
    p.label("L_k1_end")
    p("s_endpgm")
    return p

if __name__ == "__main__":
    p = emit_k1("k1_kernel")
    txt = p.finalize(verbose=True)
    print("nops:", p.nops_inserted, "lines:", txt.count("\n"))
```

```python
from common import *
from k1 import wave_setup, half_sum, vLANE

sWS = 16
sKV = 20
sW = 26; sHEAD = 24; sJ = 25; sKH = 27; sQT = 38
sMHI = 42
LDS_K2 = 65536 + 1024
FLAG_LDS = 65536
vQ0, vQ1 = 16, 20
vK0, vK1 = 24, 28
vV0 = 32; vV1 = [36, 40]
vS = [44, 60]
vP = 76
vO = 84
vKA = 2; vVA = 3; vDV = 4; vDV2 = 5
vT = 100
OFFSET = 90.0
LIMIT = 2.0 ** 110

def ids_attn(p):
    p("s_and_b32 s44, s2, 7"); p("s_lshr_b32 s45, s2, 3")
    p(f"s_lshl_b32 s{sHEAD}, s44, 1"); p("s_lshr_b32 s46, s45, 4"); p(f"s_add_u32 s{sHEAD}, s{sHEAD}, s46")
    p(f"s_and_b32 s{sJ}, s45, 15")
    p(f"s_lshr_b32 s{sKH}, s{sW}, 2"); p(f"s_and_b32 s{sQT}, s{sW}, 3")

def set_m(p, vmax, t):
    p(f"v_add_f32 v{t}, {hex(f2u(OFFSET))}, v{vmax}"); p(f"v_sub_f32 v{t}, 0, v{t}")
    p(f"v_cvt_pk_bf16_f32 v{t+1}, v{t}, v{t}"); p(f"v_lshlrev_b32 v{t+2}, 16, v{t+1}")
    p(f"v_sub_f32 v{t+2}, v{t}, v{t+2}")
    p(f"v_lshlrev_b32 v{t+1}, 16, v{t+1}")
    p(f"v_cvt_pk_bf16_f32 v{t+1}, v{t+1}, v{t+2}")
    p(f"s_mov_b64 exec, s[{sMHI}:{sMHI+1}]"); p(f"v_mov_b32 v{vQ1+2}, v{t+1}"); p("s_mov_b64 exec, -1")

def tile_max(p, S, dst, t, init=True):
    p(f"v_max3_f32 v{t}, v{S}, v{S+1}, v{S+2}")
    for i in range(3, 15, 2): p(f"v_max3_f32 v{t}, v{t}, v{S+i}, v{S+i+1}")
    if init: p(f"v_max_f32 v{dst}, v{t}, v{S+15}")
    else: p(f"v_max3_f32 v{dst}, v{dst}, v{t}, v{S+15}")

def cross_half_max(p, reg, t):
    p(f"v_mov_b32 v{t}, v{reg}"); p(f"v_mov_b32 v{t+1}, v{reg}")
    p(f"v_permlane32_swap_b32 v{t}, v{t+1}")
    p(f"v_max_f32 v{reg}, v{t}, v{t+1}")

def dma_step(p, slot, sSO, sM0, extra=None):
    p(f"s_add_u32 m0, s{sM0}, {slot*16384}")
    if extra: extra()
    else: p("s_nop 0")
    p(f"buffer_load_dwordx4 v{vDV}, s[{sKV}:{sKV+3}], s{sSO} offen lds")
    p(f"s_add_u32 m0, s{sM0}, {slot*16384+1024}")
    p("s_nop 0")
    p(f"buffer_load_dwordx4 v{vDV2}, s[{sKV}:{sKV+3}], s{sSO} offen lds")

def emit_attention(p, st_mods="", pre_wait=None, mid_hook=None, stamp=lambda n="": None):
    L = vLANE
    sSO0 = 48; sSO = 49; sM0 = 50; sIT = 51; sRETRY = 52; sBIG = 53
    p(f"v_lshlrev_b32 v{vDV}, 4, v{L}"); p(f"v_add_u32 v{vDV2}, 1024, v{vDV}")
    p(f"s_lshl_b32 s44, s{sKH}, 13")
    p(f"v_add_u32 v{vKA}, s44, v{vDV}")
    t = vT
    p(f"v_lshrrev_b32 v{t}, 5, v{L}"); p(f"v_lshlrev_b32 v{t}, 2, v{t}"); p(f"v_bfe_u32 v{t+1}, v{L}, 2, 2"); p(f"v_add_u32 v{t}, v{t}, v{t+1}")
    p(f"v_lshlrev_b32 v{t}, 6, v{t}")
    p(f"v_bfe_u32 v{t+1}, v{L}, 4, 1"); p(f"v_lshlrev_b32 v{t+1}, 5, v{t+1}"); p(f"v_add_u32 v{t}, v{t}, v{t+1}")
    p(f"v_and_b32 v{t+1}, 1, v{L}"); p(f"v_lshlrev_b32 v{t+1}, 4, v{t+1}"); p(f"v_add_u32 v{t}, v{t}, v{t+1}")
    p(f"v_bfe_u32 v{t+1}, v{L}, 1, 1"); p(f"v_lshlrev_b32 v{t+1}, 3, v{t+1}"); p(f"v_add_u32 v{t}, v{t}, v{t+1}")
    p("s_add_u32 s44, s44, 2048"); p(f"v_add_u32 v{vVA}, s44, v{t}")
    p(f"s_lshl_b32 s44, s{sHEAD}, 6"); p(f"s_lshl_b32 s45, s{sKH}, 5"); p("s_add_u32 s44, s44, s45"); p("s_lshl_b32 s44, s44, 12")
    p(f"s_lshl_b32 s45, s{sQT}, 11"); p("s_add_u32 s44, s44, s45"); p(f"s_add_u32 s{sSO0}, s44, {KV_OFF}")
    p(f"s_lshl_b32 s{sM0}, s{sKH}, 13"); p(f"s_add_u32 s{sM0}, s{sM0}, s45")
    for i in range(4): p(f"s_mov_b32 s{sKV+i}, s{sWS+i}")
    p(f"v_mov_b32 v{t}, {FLAG_LDS}"); p(f"v_mov_b32 v{t+1}, 0"); p(f"ds_write_b32 v{t}, v{t+1}")
    if pre_wait: pre_wait()
    p(f"s_lshl_b32 s44, s{sHEAD}, 6"); p(f"s_lshl_b32 s45, s{sJ}, 2"); p("s_add_u32 s44, s44, s45"); p(f"s_add_u32 s44, s44, s{sQT}")
    p("s_lshl_b32 s44, s44, 11")
    p(f"buffer_load_dwordx4 v[{vQ0}:{vQ0+3}], v{vDV}, s[{sWS}:{sWS+3}], s44 offen")
    p(f"buffer_load_dwordx4 v[{vQ1}:{vQ1+3}], v{vDV2}, s[{sWS}:{sWS+3}], s44 offen")
    p(f"s_mov_b32 s{sRETRY}, 0")
    def start_dma():
        p(f"s_mov_b32 s{sSO}, s{sSO0}"); p(f"s_mov_b32 s{sKV+2}, s{sWS+2}")
        for s_ in range(3):
            dma_step(p, s_, sSO, sM0); p(f"s_add_u32 s{sSO}, s{sSO}, 8192")
    start_dma()
    p("s_waitcnt vmcnt(4) lgkmcnt(0)")
    p(f"s_mov_b64 exec, s[{sMHI}:{sMHI+1}]"); p(f"v_mov_b32 v{vQ1+2}, 0"); p("s_mov_b64 exec, -1")
    p("s_barrier")
    p(f"ds_read_b128 v[{vK0}:{vK0+3}], v{vDV}"); p(f"ds_read_b128 v[{vK1}:{vK1+3}], v{vDV} offset:1024")
    p("s_waitcnt lgkmcnt(0)")
    S = vS[0]
    p(f"v_mfma_f32_32x32x16_bf16 v[{S}:{S+15}], v[{vK0}:{vK0+3}], v[{vQ0}:{vQ0+3}], 0")
    p(f"v_mfma_f32_32x32x16_bf16 v[{S}:{S+15}], v[{vK1}:{vK1+3}], v[{vQ1}:{vQ1+3}], v[{S}:{S+15}]")
    tile_max(p, S, t+4, t); cross_half_max(p, t+4, t); set_m(p, t+4, t)
    stamp("est")
    p.label("L_att_main")
    p("s_waitcnt vmcnt(2)"); p("s_barrier")
    lg = Cnt(p, "lgkmcnt", 15)
    def koff(tg): return ((tg // 2) % 4) * 16384 + (tg % 2) * 4096
    def rdK(tg):
        lg.issue(f"ds_read_b128 v[{vK0}:{vK0+3}], v{vKA} offset:{koff(tg)}")
        lg.issue(f"ds_read_b128 v[{vK1}:{vK1+3}], v{vKA} offset:{koff(tg)+1024}", tag=("K", tg))
    def rdV(tg, m):
        b = vV0 if m == 0 else vV1[tg % 2]
        o = koff(tg) + 1024 * m
        lg.issue(f"ds_read_b64_tr_b16 v[{b}:{b+1}], v{vVA} offset:{o}")
        lg.issue(f"ds_read_b64_tr_b16 v[{b+2}:{b+3}], v{vVA} offset:{o+512}", tag=("V", tg, m))
    rdK(0);
    for i in range(16): p(f"v_mov_b32 v{vO+i}, 0")
    for i in range(4): p(f"v_mov_b32 v{vP+4+i}, 0"); p(f"v_mov_b32 v{vV1[1]+i}, 0")
    lg.wait(("K", 0))
    p(f"v_mfma_f32_32x32x16_bf16 v[{vS[0]}:{vS[0]+15}], v[{vK0}:{vK0+3}], v[{vQ0}:{vQ0+3}], 0")
    p(f"v_mfma_f32_32x32x16_bf16 v[{vS[0]}:{vS[0]+15}], v[{vK1}:{vK1+3}], v[{vQ1}:{vQ1+3}], v[{vS[0]}:{vS[0]+15}]")
    rdK(1); rdV(0, 1); rdV(0, 0)
    p(f"s_mov_b32 s{sIT}, 0")
    p("s_nop 7")
    p.raw(".p2align 6")
    p.label("L_att_loop")
    def period(tg):
        X = vS[tg % 2]; Y = vS[(tg + 1) % 2]
        def ex(i): p(f"v_exp_f32 v{X+i}, v{X+i}")
        def cv(i): p(f"v_cvt_pk_bf16_f32 v{vP+i}, v{X+2*i}, v{X+2*i+1}")
        p("s_waitcnt lgkmcnt(4)")
        p(f"v_mfma_f32_32x32x16_bf16 v[{Y}:{Y+15}], v[{vK0}:{vK0+3}], v[{vQ0}:{vQ0+3}], 0")
        for i in range(0, 4): ex(i)
        cv(0); cv(1)
        p(f"v_mfma_f32_32x32x16_bf16 v[{Y}:{Y+15}], v[{vK1}:{vK1+3}], v[{vQ1}:{vQ1+3}], v[{Y}:{Y+15}]")
        rdK(tg + 2)
        for i in range(4, 8): ex(i)
        cv(2); cv(3)
        b1 = vV1[(tg + 1) % 2]
        p(f"v_mfma_f32_32x32x16_bf16 v[{vO}:{vO+15}], v[{b1}:{b1+3}], v[{vP+4}:{vP+7}], v[{vO}:{vO+15}]")
        rdV(tg + 1, 1)
        for i in range(8, 12): ex(i)
        cv(4); cv(5)
        p("s_waitcnt lgkmcnt(4)")
        p(f"v_mfma_f32_32x32x16_bf16 v[{vO}:{vO+15}], v[{vV0}:{vV0+3}], v[{vP}:{vP+3}], v[{vO}:{vO+15}]")
        rdV(tg + 1, 0)
        for i in range(12, 16): ex(i)
        cv(6); cv(7)
    for st in range(4):
        p("s_waitcnt vmcnt(2)"); p("s_barrier")
        if st == 1:
            p(f"s_cmp_eq_u32 s{sIT}, 3"); p(f"s_cselect_b32 s{sKV+2}, 0, s{sKV+2}")
        dma_step(p, (st + 3) % 4, sSO, sM0)
        p(f"s_add_u32 s{sSO}, s{sSO}, 8192")
        if mid_hook: mid_hook(st)
        period(2*st); period(2*st + 1)
    p(f"s_add_u32 s{sIT}, s{sIT}, 1"); p(f"s_cmp_lt_u32 s{sIT}, 4"); p("s_cbranch_scc1 L_att_loop")
    b1 = vV1[1]
    p("s_waitcnt lgkmcnt(0)")
    p(f"v_mfma_f32_32x32x16_bf16 v[{vO}:{vO+15}], v[{b1}:{b1+3}], v[{vP+4}:{vP+7}], v[{vO}:{vO+15}]")
    p("s_waitcnt vmcnt(0)"); p("s_nop 7")
    stamp("loopend")
    p("s_barrier")
    lab_nochk = p.newlabel("L_nochk")
    p(f"s_cmp_lg_u32 s{sRETRY}, 0"); p(f"s_cbranch_scc1 {lab_nochk}")
    p(f"v_mov_b32 v{t}, 0")
    for i in range(16): p(f"v_fma_f32 v{t}, v{vO+i}, 0, v{t}")
    p(f"v_cmp_u_f32 vcc, v{t}, v{t}")
    p(f"v_mov_b32 v{t+1}, {hex(f2u(LIMIT))}")
    p(f"v_cmp_nlt_f32 s[46:47], v{vO+12}, v{t+1}")
    p(f"s_and_b64 s[46:47], s[46:47], s[{sMHI}:{sMHI+1}]"); p("s_or_b64 vcc, vcc, s[46:47]")
    p(f"s_cbranch_vccz {lab_nochk}")
    p(f"v_mov_b32 v{t}, {FLAG_LDS}"); p(f"v_mov_b32 v{t+1}, 1"); p(f"ds_write_b32 v{t}, v{t+1}")
    p.label(lab_nochk)
    p(f"s_lshl_b32 s44, s{sQT}, 12"); p(f"v_lshlrev_b32 v{t}, 4, v{L}"); p(f"v_add_u32 v{t}, s44, v{t}")
    lab = p.newlabel("L_nopub")
    p(f"s_cmp_eq_u32 s{sKH}, 0"); p(f"s_cbranch_scc1 {lab}")
    for i in range(4): p(f"ds_write_b128 v{t}, v[{vO+4*i}:{vO+4*i+3}] offset:{1024*i}")
    p.label(lab)
    p("s_waitcnt lgkmcnt(0)"); p("s_barrier")
    p(f"s_cmp_lg_u32 s{sRETRY}, 0"); p("s_cbranch_scc1 L_att_finish")
    p(f"v_mov_b32 v{t+1}, {FLAG_LDS}"); p(f"ds_read_b32 v{t+1}, v{t+1}"); p("s_waitcnt lgkmcnt(0)")
    p(f"v_readfirstlane_b32 s44, v{t+1}"); p("s_cmp_lg_u32 s44, 0"); p("s_cbranch_scc1 L_att_fallback")
    p.label("L_att_finish")
    p(f"s_cmp_lg_u32 s{sKH}, 0"); p("s_cbranch_scc1 L_att_done")
    Z = vS[0]
    for i in range(4): p(f"ds_read_b128 v[{Z+4*i}:{Z+4*i+3}], v{t} offset:{1024*i}")
    p("s_waitcnt lgkmcnt(0)")
    for i in range(16): p(f"v_add_f32 v{vO+i}, v{vO+i}, v{Z+i}")
    p(f"v_mov_b32 v{t+1}, v{vO+12}"); p(f"v_mov_b32 v{t+2}, v{vO+12}")
    p(f"v_permlane32_swap_b32 v{t+1}, v{t+2}")
    p(f"v_rcp_f32 v{t+2}, v{t+2}")
    for i in range(16): p(f"v_mul_f32 v{vO+i}, v{t+2}, v{vO+i}")
    for i in range(8): p(f"v_cvt_pk_bf16_f32 v{vP+i}, v{vO+2*i}, v{vO+2*i+1}")
    p(f"s_mov_b64 exec, s[{sMHI}:{sMHI+1}]"); p(f"v_mov_b32 v{vP+6}, 0"); p(f"v_mov_b32 v{vP+7}, 0"); p("s_mov_b64 exec, -1")
    p(f"s_lshl_b32 s44, s{sJ}, 2"); p(f"s_add_u32 s44, s44, s{sQT}"); p("s_lshl_b32 s44, s44, 4"); p(f"s_add_u32 s44, s44, s{sHEAD}")
    p("s_lshl_b32 s44, s44, 11"); p(f"s_add_u32 s44, s44, {O_OFF}")
    p(f"buffer_store_dwordx4 v[{vP}:{vP+3}], v{vDV}, s[{sWS}:{sWS+3}], s44 offen {st_mods}")
    p(f"buffer_store_dwordx4 v[{vP+4}:{vP+7}], v{vDV2}, s[{sWS}:{sWS+3}], s44 offen {st_mods}")
    p("s_branch L_att_done")
    p.label("L_att_fallback")
    p("s_barrier")
    p(f"s_mov_b32 s{sRETRY}, 1")
    p(f"s_mov_b64 exec, s[{sMHI}:{sMHI+1}]"); p(f"v_mov_b32 v{vQ1+2}, 0"); p("s_mov_b64 exec, -1")
    vM = t + 4
    p(f"v_mov_b32 v{vM}, 0xff800000")
    p(f"s_mov_b32 s{sSO}, s{sSO0}"); p(f"s_mov_b32 s{sIT}, 0"); p(f"s_mov_b32 s{sKV+2}, s{sWS+2}")
    p.label("L_att_fb_loop")
    dma_step(p, 0, sSO, sM0); p(f"s_add_u32 s{sSO}, s{sSO}, 8192")
    p("s_waitcnt vmcnt(0)"); p("s_barrier")
    for tl in range(2):
        p(f"ds_read_b128 v[{vK0}:{vK0+3}], v{vKA} offset:{tl*4096}"); p(f"ds_read_b128 v[{vK1}:{vK1+3}], v{vKA} offset:{tl*4096+1024}")
        p("s_waitcnt lgkmcnt(0)")
        p(f"v_mfma_f32_32x32x16_bf16 v[{S}:{S+15}], v[{vK0}:{vK0+3}], v[{vQ0}:{vQ0+3}], 0")
        p(f"v_mfma_f32_32x32x16_bf16 v[{S}:{S+15}], v[{vK1}:{vK1+3}], v[{vQ1}:{vQ1+3}], v[{S}:{S+15}]")
        tile_max(p, S, vM, t, init=False)
    p("s_barrier")
    p(f"s_add_u32 s{sIT}, s{sIT}, 1"); p(f"s_cmp_lt_u32 s{sIT}, 16"); p("s_cbranch_scc1 L_att_fb_loop")
    cross_half_max(p, vM, t)
    p(f"s_lshl_b32 s44, s{sW}, 8"); p(f"v_lshlrev_b32 v{t}, 2, v{L}"); p(f"v_add_u32 v{t+1}, s44, v{t}")
    p(f"ds_write_b32 v{t+1}, v{vM}"); p("s_waitcnt lgkmcnt(0)"); p("s_barrier")
    p(f"v_xor_b32 v{t+1}, 1024, v{t+1}"); p(f"ds_read_b32 v{t+2}, v{t+1}"); p("s_waitcnt lgkmcnt(0)")
    p(f"v_max_f32 v{vM}, v{vM}, v{t+2}")
    set_m(p, vM, t)
    p("s_barrier")
    start_dma()
    p("s_branch L_att_main")
    p.label("L_att_done")

def emit_k2(name):
    p = Prog()
    p("s_cmp_ge_u32 s2, 256"); p("s_cbranch_scc1 L_k2_end")
    p("s_load_dwordx2 s[36:37], s[0:1], 80")
    wave_setup(p); ids_attn(p)
    p(f"s_mov_b32 s{sMHI}, 0"); p(f"s_mov_b32 s{sMHI+1}, -1")
    p("s_waitcnt lgkmcnt(0)")
    srd(p, sWS, 36, WS_SIZE)
    st = Stamper(p); st.real(); st("start")
    emit_attention(p, stamp=st)
    p("s_waitcnt vmcnt(0)")
    st("end"); st.real(); st.flush(sWS, sW, 1); p("s_waitcnt vmcnt(0)")
    p.label("L_k2_end")
    p("s_endpgm")
    return p

if __name__ == "__main__":
    p = emit_k2("k2_kernel")
    txt = p.finalize(verbose=True)
    print("nops:", p.nops_inserted, "lines:", txt.count("\n"))
```

```python
from common import *
from k1 import wave_setup, vLANE, w128_dma_voff

sWS, sW2, sWO, sXR, sOUT, sB2 = 16, 4, 8, 12, 20, 28
sW = 26; sI = 24; sE = 25; sTT = 27; sKQ = 38
vH = 144
vOF = 100
vACC = 16
vWB = 48
vA0 = 2; vA1 = 3; vA0h = 4; vA1h = 5; vD = 6; vLIN = 7
vT = 72
PART_STRIDE = 272
LDS_K3 = 131072

def ids_fin(p):
    p("s_and_b32 s44, s2, 7"); p("s_lshr_b32 s45, s2, 3")
    p(f"s_lshl_b32 s{sI}, s44, 2"); p("s_and_b32 s46, s45, 3"); p(f"s_add_u32 s{sI}, s{sI}, s46")
    p(f"s_lshr_b32 s{sE}, s45, 2")
    p(f"s_and_b32 s{sTT}, s{sW}, 1"); p(f"s_lshr_b32 s{sKQ}, s{sW}, 1")

def tr_addr_fin(p, dst, t0, t1, t2):
    L = vLANE
    p(f"v_lshrrev_b32 v{t0}, 5, v{L}"); p(f"v_lshlrev_b32 v{t0}, 2, v{t0}"); p(f"v_bfe_u32 v{t1}, v{L}, 2, 2"); p(f"v_add_u32 v{t0}, v{t0}, v{t1}")
    p(f"v_lshlrev_b32 v{dst}, 7, v{t0}")
    p(f"v_bfe_u32 v{t0}, v{L}, 4, 1"); p(f"v_lshlrev_b32 v{t0}, 5, v{t0}")
    p(f"v_and_b32 v{t1}, 3, v{L}"); p(f"v_lshlrev_b32 v{t1}, 3, v{t1}"); p(f"v_add_u32 v{t0}, v{t0}, v{t1}")
    p(f"v_bfe_u32 v{t1}, v{L}, 3, 1"); p(f"v_lshlrev_b32 v{t1}, 6, v{t1}"); p(f"v_xor_b32 v{t0}, v{t0}, v{t1}")
    p(f"v_add_u32 v{dst}, v{dst}, v{t0}")

def emit_final(p, stamp=lambda n="": None):
    L = vLANE; t = vT
    p(f"v_lshlrev_b32 v{vLIN}, 4, v{L}")
    w128_dma_voff(p, vD, 896, t, t+1)
    tr_addr_fin(p, vA0, t, t+1, t+2)
    p(f"s_lshl_b32 s44, s{sKQ}, 11"); p(f"v_add_u32 v{vA0}, s44, v{vA0}")
    p(f"v_xor_b32 v{vA1}, 64, v{vA0}"); p(f"v_add_u32 v{vA0h}, 0x10000, v{vA0}"); p(f"v_add_u32 v{vA1h}, 0x10000, v{vA1}")
    sT = 47
    p(f"s_lshl_b32 s{sT}, s{sI}, 1"); p(f"s_add_u32 s{sT}, s{sT}, s{sTT}")
    sSW2 = 48; sSWO = 49; sM0 = 50
    p(f"s_mul_i32 s{sSW2}, s{sKQ}, 448"); p(f"s_lshl_b32 s44, s{sTT}, 3"); p(f"s_add_u32 s{sSW2}, s{sSW2}, s44"); p(f"s_mul_i32 s{sSW2}, s{sSW2}, 896")
    p(f"s_lshl_b32 s45, s{sE}, 7"); p(f"s_add_u32 s{sSW2}, s{sSW2}, s45")
    p(f"s_mul_i32 s{sSWO}, s{sKQ}, 112"); p(f"s_add_u32 s{sSWO}, s{sSWO}, s44"); p(f"s_mul_i32 s{sSWO}, s{sSWO}, 896"); p(f"s_add_u32 s{sSWO}, s{sSWO}, s45")
    p(f"s_lshl_b32 s{sM0}, s{sKQ}, 11"); p(f"s_lshl_b32 s44, s{sTT}, 10"); p(f"s_add_u32 s{sM0}, s{sM0}, s44")
    vm = Cnt(p, "vmcnt", 63)
    def wdma(n):
        p(f"s_add_u32 m0, s{sM0}, {(n % 16) * 8192}")
        if n < 28:
            p(f"s_add_u32 s44, s{sSW2}, {n*16*896}")
            vm.issue(f"buffer_load_dwordx4 v{vD}, s[{sW2}:{sW2+3}], s44 offen lds", tag=("w", n))
        else:
            m = n - 28
            p(f"s_add_u32 s44, s{sSWO}, {(28*(m//2) + 16*(m%2))*896}")
            vm.issue(f"buffer_load_dwordx4 v{vD}, s[{sWO}:{sWO+3}], s44 offen lds", tag=("w", n))
    for n in range(4): wdma(n)
    p(f"s_mul_i32 s45, s{sT}, 56"); p(f"s_mul_i32 s46, s{sKQ}, 14"); p("s_add_u32 s45, s45, s46"); p("s_lshl_b32 s45, s45, 11"); p(f"s_add_u32 s45, s45, {H_OFF}")
    for n in range(28):
        if n % 4 == 0 and n: p("s_add_u32 s45, s45, 4096")
        vm.issue(f"buffer_load_dwordx4 v[{vH+4*n}:{vH+4*n+3}], v{vLIN}, s[{sWS}:{sWS+3}], s45 offen offset:{(n%4)*1024}", tag=("h", n))
        if n == 7:
            for m in range(4, 8): wdma(m)
        if n == 15:
            for m in range(8, 12): wdma(m)
    for n in range(12, 16): wdma(n)
    p(f"s_lshl_b32 s45, s{sT}, 4"); p(f"s_lshl_b32 s46, s{sKQ}, 2"); p("s_add_u32 s45, s45, s46"); p("s_lshl_b32 s45, s45, 11"); p(f"s_add_u32 s45, s45, {O_OFF}")
    for n in range(8):
        if n == 4: p("s_add_u32 s45, s45, 4096")
        vm.issue(f"buffer_load_dwordx4 v[{vOF+4*n}:{vOF+4*n+3}], v{vLIN}, s[{sWS}:{sWS+3}], s45 offen offset:{(n%4)*1024}", tag=("o", n))
    lg = Cnt(p, "lgkmcnt", 15)
    def reads(n):
        b = vWB + 8 * (n % 3); slot = n % 16
        a0, a1 = (vA0, vA1) if slot < 8 else (vA0h, vA1h)
        o = (slot % 8) * 8192
        lg.issue(f"ds_read_b64_tr_b16 v[{b}:{b+1}], v{a0} offset:{o}")
        lg.issue(f"ds_read_b64_tr_b16 v[{b+2}:{b+3}], v{a0} offset:{o+1024}")
        lg.issue(f"ds_read_b64_tr_b16 v[{b+4}:{b+5}], v{a1} offset:{o}")
        lg.issue(f"ds_read_b64_tr_b16 v[{b+6}:{b+7}], v{a1} offset:{o+1024}", tag=("r", n))
    def mf(n):
        b = vWB + 8 * (n % 3)
        x = vH + 4*n if n < 28 else vOF + 4*(n - 28)
        vm.wait(("h", n) if n < 28 else ("o", n - 28))
        lg.wait(("r", n))
        for ct in range(2):
            a = vACC + 16*ct
            c = "0" if n == 0 else f"v[{a}:{a+15}]"
            p(f"v_mfma_f32_32x32x16_bf16 v[{a}:{a+15}], v[{b+4*ct}:{b+4*ct+3}], v[{x}:{x+3}], {c}")
    for g in range(9):
        lg.wait_all()
        vm.wait(("w", 4*g + 3))
        p("s_barrier")
        if g in (0, 1, 4, 8): stamp(f"bar{g}")
        if g >= 1 and g + 3 <= 8:
            for n in range(4*(g+3), 4*(g+3) + 4): wdma(n)
        reads(4*g)
        if g > 0: mf(4*g - 1)
        reads(4*g + 1)
        mf(4*g)
        reads(4*g + 2); mf(4*g + 1)
        reads(4*g + 3); mf(4*g + 2)
    lg.wait_all(); mf(35)
    stamp("mfdone")
    vXR = vWB; vB2 = vWB + 4; vOA = vWB + 8
    p(f"v_lshrrev_b32 v{t}, 3, v{L}"); p(f"v_mul_u32_u24 v{vOA}, 896, v{t}")
    p(f"v_and_b32 v{t+1}, 7, v{L}"); p(f"v_lshlrev_b32 v{t+1}, 4, v{t+1}"); p(f"v_add_u32 v{vOA}, v{vOA}, v{t+1}")
    p(f"s_lshl_b32 s44, s{sI}, 3"); p(f"s_add_u32 s44, s44, s{sW}"); p(f"s_mul_i32 s44, s44, {8*896}"); p(f"s_lshl_b32 s45, s{sE}, 7"); p("s_add_u32 s44, s44, s45")
    p(f"buffer_load_dwordx4 v[{vXR}:{vXR+3}], v{vOA}, s[{sXR}:{sXR+3}], s44 offen")
    p(f"buffer_load_dwordx4 v[{vB2}:{vB2+3}], v{t+1}, s[{sB2}:{sB2+3}], s45 offen")
    p("s_barrier")
    p(f"v_and_b32 v{t+2}, 31, v{L}"); p(f"v_mul_u32_u24 v{t+2}, {PART_STRIDE}, v{t+2}")
    p(f"v_lshrrev_b32 v{t+3}, 5, v{L}"); p(f"v_lshlrev_b32 v{t+3}, 4, v{t+3}"); p(f"v_add_u32 v{t+2}, v{t+2}, v{t+3}")
    p(f"s_mul_i32 s46, s{sKQ}, {64*PART_STRIDE}"); p(f"s_mul_i32 s47, s{sTT}, {32*PART_STRIDE}"); p("s_add_u32 s46, s46, s47")
    p(f"v_add_u32 v{t+2}, s46, v{t+2}")
    p("s_nop 3")
    for ct in range(2):
        for aa in range(4):
            r = vACC + 16*ct + 4*aa
            p(f"ds_write_b128 v{t+2}, v[{r}:{r+3}] offset:{(32*ct + 8*aa)*4}")
    p("s_waitcnt lgkmcnt(0)"); p("s_barrier")
    p(f"v_lshrrev_b32 v{t}, 3, v{L}"); p(f"s_lshl_b32 s46, s{sW}, 3"); p(f"v_add_u32 v{t}, s46, v{t}"); p(f"v_mul_u32_u24 v{t}, {PART_STRIDE}, v{t}")
    p(f"v_and_b32 v{t+1}, 7, v{L}"); p(f"v_lshlrev_b32 v{t+1}, 5, v{t+1}"); p(f"v_add_u32 v{t}, v{t}, v{t+1}")
    R = vACC
    for q in range(4):
        p(f"ds_read_b128 v[{R+8*q}:{R+8*q+3}], v{t} offset:{q*64*PART_STRIDE}")
        p(f"ds_read_b128 v[{R+8*q+4}:{R+8*q+7}], v{t} offset:{q*64*PART_STRIDE+16}")
    p("s_waitcnt vmcnt(0)")
    U = vWB + 12
    for i in range(4):
        p(f"v_lshlrev_b32 v{U+2*i}, 16, v{vXR+i}"); p(f"v_and_b32 v{U+2*i+1}, 0xffff0000, v{vXR+i}")
    for i in range(4):
        p(f"v_lshlrev_b32 v{t+2}, 16, v{vB2+i}"); p(f"v_and_b32 v{t+3}, 0xffff0000, v{vB2+i}")
        p(f"v_add_f32 v{U+2*i}, v{U+2*i}, v{t+2}"); p(f"v_add_f32 v{U+2*i+1}, v{U+2*i+1}, v{t+3}")
    p("s_waitcnt lgkmcnt(0)")
    for i in range(8):
        p(f"v_add_f32 v{R+i}, v{R+i}, v{R+8+i}"); p(f"v_add_f32 v{R+16+i}, v{R+16+i}, v{R+24+i}")
    for i in range(8):
        p(f"v_add_f32 v{R+i}, v{R+i}, v{R+16+i}");
    for i in range(8):
        p(f"v_add_f32 v{R+i}, v{R+i}, v{U+i}")
    for i in range(4): p(f"v_cvt_pk_bf16_f32 v{R+8+i}, v{R+2*i}, v{R+2*i+1}")
    p(f"buffer_store_dwordx4 v[{R+8}:{R+11}], v{vOA}, s[{sOUT}:{sOUT+3}], s44 offen")

def emit_k3(name):
    p = Prog()
    p("s_cmp_ge_u32 s2, 224"); p("s_cbranch_scc1 L_k3_end")
    p("s_load_dwordx2 s[30:31], s[0:1], 0"); p("s_load_dwordx2 s[32:33], s[0:1], 16")
    p("s_load_dwordx4 s[52:55], s[0:1], 48"); p("s_load_dwordx2 s[34:35], s[0:1], 64"); p("s_load_dwordx2 s[36:37], s[0:1], 80")
    wave_setup(p); ids_fin(p)
    p("s_waitcnt lgkmcnt(0)")
    srd(p, sXR, 30, X_BYTES); srd(p, sWO, 32, WO_BYTES); srd(p, sW2, 52, W2_BYTES); srd(p, sOUT, 34, X_BYTES); srd(p, sWS, 36, WS_SIZE)
    srd(p, sB2, 54, 896)
    st = Stamper(p); st.real(); st("start")
    emit_final(p, stamp=st)
    p("s_waitcnt vmcnt(0)")
    st("end"); st.real(); st.flush(sWS, sW, 2); p("s_waitcnt vmcnt(0)")
    p.label("L_k3_end")
    p("s_endpgm")
    return p

if __name__ == "__main__":
    p = emit_k3("k3_kernel")
    txt = p.finalize(verbose=True)
    print("nops:", p.nops_inserted, "lines:", txt.count("\n"))
```

```python
import sys
from common import *
import k1, k2, k3
def build(out, order):
    P = {'1': k1.emit_k1("k1_kernel"), '2': k2.emit_k2("k2_kernel"), '3': k3.emit_k3("k3_kernel")}
    LL = {'1': "; @launch kernel=k1_kernel grid=(256,1,1) block=(512,1,1) lds=163840",
         '2': f"; @launch kernel=k2_kernel grid=(256,1,1) block=(512,1,1) lds={k2.LDS_K2}",
         '3': f"; @launch kernel=k3_kernel grid=(224,1,1) block=(512,1,1) lds={k3.LDS_K3}",
         '0': "; @launch kernel=k0_kernel grid=(256,1,1) block=(512,1,1) lds=0"}
    txt = header([LL[c] for c in order])
    for c in '123': txt += kernel_text(f"k{c}_kernel", P[c].finalize())
    if '0' in order: txt += kernel_text("k0_kernel", "  s_endpgm\n")
    txt += '.section .rodata,"a"\n'
    for c in '123': txt += '.p2align 6\n' + kd(f"k{c}_kernel")
    if '0' in order: txt += '.p2align 6\n' + kd("k0_kernel", vgpr=8)
    open(out, "w").write(txt)
for o in ['123', '1123', '1223', '1233', '0123']:
    build(f'v{o}.s', o)
```

```python
import sys
from common import *
import k1, k2, k3
def patch(txt, k, endlabel):
    lines = txt.split("\n")
    out = ["  s_memrealtime s[96:97]", "  s_load_dwordx2 s[94:95], s[0:1], 72", "  s_waitcnt lgkmcnt(0)", "  v_mov_b32 v254, v0"] if False else []
    out = ["  s_memrealtime s[96:97]", "  s_load_dwordx2 s[94:95], s[0:1], 72", "  s_waitcnt lgkmcnt(0)"]
    for l in lines:
        if l.strip() == endlabel + ":":
            out.append(l)
            out += [f"  s_cmp_lg_u32 s2, 0", f"  s_cbranch_scc1 L_dbg_skip{k}",
                    f"  s_cmp_lg_u32 s26, 0", f"  s_cbranch_scc1 L_dbg_skip{k}",
                    "  s_memrealtime s[98:99]", "  s_waitcnt lgkmcnt(0)",
                    f"  s_sub_u32 s94, s94, {k*512}", "  s_subb_u32 s95, s95, 0",
                    "  v_mov_b32 v2, 0", "  v_mov_b32 v4, s96", "  v_mov_b32 v5, s98",
                    f"  global_store_dwordx2 v2, v[4:5], s[94:95] offset:{8*k}", f"  global_store_dwordx2 v2, v[4:5], s[94:95] offset:{512+8*k}", f"  global_store_dwordx2 v2, v[4:5], s[94:95] offset:{1024+8*k}", "  s_waitcnt vmcnt(0)",
                    f"L_dbg_skip{k}:"]
        else: out.append(l)
    return "\n".join(out)
def build(out):
    P = [k1.emit_k1("k1_kernel").finalize(), k2.emit_k2("k2_kernel").finalize(), k3.emit_k3("k3_kernel").finalize()]
    L = ["; @launch kernel=k1_kernel grid=(256,1,1) block=(512,1,1) lds=163840",
         f"; @launch kernel=k2_kernel grid=(256,1,1) block=(512,1,1) lds={k2.LDS_K2}",
         f"; @launch kernel=k3_kernel grid=(224,1,1) block=(512,1,1) lds={k3.LDS_K3}"]
    txt = header(L)
    for k in range(3): txt += kernel_text(f"k{k+1}_kernel", patch(P[k], k, f"L_k{k+1}_end"))
    txt += '.section .rodata,"a"\n'
    for c in '123': txt += '.p2align 6\n' + kd(f"k{c}_kernel")
    open(out, "w").write(txt)
build('dbg123.s')
```
